```python
import torch

def _softmax(x, axis=-1):
    return torch.softmax(x, dim=axis)

def _gelu(x):
    return torch.nn.functional.gelu(x, approximate='tanh')

def _silu(x):
    return torch.nn.functional.silu(x)

def _sigmoid(x):
    return torch.sigmoid(x)

def _layernorm(x, axis=-1, eps=1e-05):
    m = x.mean(dim=axis, keepdim=True)
    v = x.var(dim=axis, keepdim=True, unbiased=False)
    return (x - m) / torch.sqrt(v + eps)

def _scatter_add(tgt, idx, src, axis=0):
    return tgt.clone().index_add_(axis, idx, src)

def _segment_sum(src, seg, n):
    out = torch.zeros((n,) + src.shape[1:], dtype=src.dtype)
    return out.index_add_(0, seg, src)

def _pad(x, pw):
    flat = tuple((v for pair in reversed(pw) for v in pair))
    return torch.nn.functional.pad(x, flat)
kernel_name = 'sequential_preLN__ssm_conv_h3__mixer_gmlp__prompt'

def setup_inputs():

    _w = lambda a: (lambda t: t.to(torch.bfloat16) if t.is_floating_point() else t)(torch.as_tensor(a))

    def _A_setup():
        B, S, D = (1, 2048, 448)
        ks = 4
        return {'q': _w((lambda *s: torch.randn(*s, dtype=torch.bfloat16) * 0.05)(B, S, D)), 'k': _w((lambda *s: torch.randn(*s, dtype=torch.bfloat16) * 0.4)(B, S, D)), 'v': _w((lambda *s: torch.randn(*s, dtype=torch.bfloat16) * 0.4)(B, S, D)), 'shift_k': _w((lambda *s: torch.randn(*s, dtype=torch.bfloat16) * 0.4)(D, ks) * 0.5), 'ssm_k': _w((lambda *s: torch.randn(*s, dtype=torch.bfloat16) * 0.4)(D, S) * (1.0 / S ** 0.5)), 'ssm_D': _w((lambda *s: torch.randn(*s, dtype=torch.bfloat16) * 0.4)(D))}
    _A_in = _A_setup()

    def _B_setup():
        B, S, D, F = (1, 2048, 448, 1792)
        Fh = F // 2
        return {'x': _w((lambda *s: torch.randn(*s, dtype=torch.bfloat16) * 0.05)(B, S, D)), 'w_in': _w((lambda *s: torch.randn(*s, dtype=torch.bfloat16) * 0.4)(D, 2 * Fh)), 'w_sp': _w(0.01 * (lambda *s: torch.randn(*s, dtype=torch.bfloat16) * 0.4)(S, S)), 'b_sp': _w(1.0 + 0.01 * (lambda *s: torch.randn(*s, dtype=torch.bfloat16) * 0.05)(S)), 'w_out': _w((lambda *s: torch.randn(*s, dtype=torch.bfloat16) * 0.05)(Fh, D))}
    _B_in = _B_setup()
    return {'A_q': _A_in['q'], 'A_k': _A_in['k'], 'A_v': _A_in['v'], 'A_shift_k': _A_in['shift_k'], 'A_ssm_k': _A_in['ssm_k'], 'A_ssm_D': _A_in['ssm_D'], 'B_x': _B_in['x'], 'B_w_in': _B_in['w_in'], 'B_w_sp': _B_in['w_sp'], 'B_b_sp': _B_in['b_sp'], 'B_w_out': _B_in['w_out']}

def reference(A_q, A_k, A_v, A_shift_k, A_ssm_k, A_ssm_D, B_x, B_w_in, B_w_sp, B_b_sp, B_w_out):

    def _A_ref(q, k, v, shift_k, ssm_k, ssm_D):
        B, S, D = q.shape
        ks = shift_k.shape[-1]
        k_pad = _pad(k, ((0, 0), (ks - 1, 0), (0, 0)))
        k_shift = torch.zeros_like(k)
        for t in range(ks):
            k_shift = k_shift + k_pad[:, t:t + S, :] * shift_k[:, ks - 1 - t][None, None, :]
        kv = k_shift * v
        L = 2 * S
        kv_pad = _pad(kv, ((0, 0), (0, S), (0, 0)))
        kf_pad = _pad(ssm_k, ((0, 0), (0, S)))
        kv_f = (lambda x, axes=(-2, -1): torch.fft.rfft2(x.float(), dim=axes))(kv_pad[:, None, :, :], axes=(1, 2))
        kf_f = (lambda x, axes=(-2, -1): torch.fft.rfft2(x.float(), dim=axes))(kf_pad[:, None, :], axes=(1, 2))
        kf_f = (lambda x, *d: x.permute(*d))(kf_f, 1, 2, 0)
        y_f = kv_f * kf_f[None, :, :, :]
        y = (lambda x, s, axes=(-2, -1): torch.fft.irfft2(x, s=s, dim=axes).to(torch.bfloat16))(y_f, (1, L), axes=(1, 2))[:, 0, :S, :]
        y = y + kv * ssm_D[None, None, :]
        return q * y

    def _B_ref(x, w_in, w_sp, b_sp, w_out):
        B, S, D = x.shape
        F = w_in.shape[-1]
        Fh = F // 2
        z = _gelu(torch.einsum('bsd,df->bsf', x, w_in))
        z1 = z[..., :Fh].clone()
        z2 = _layernorm(z[..., Fh:], axis=-1)
        g = torch.einsum('ts,bsf->btf', w_sp, z2) + b_sp[None, :, None]
        return torch.einsum('bsf,fd->bsd', z1 * g, w_out)
    x = A_q
    h = x + _A_ref(_layernorm(x, axis=-1), A_k, A_v, A_shift_k, A_ssm_k, A_ssm_D)
    h2 = h + _B_ref(_layernorm(h, axis=-1), B_w_in, B_w_sp, B_b_sp, B_w_out)
    return h2
```

```python
import sys
OUT = "sequential_preLN__ssm_conv_h3__mixer_gmlp__prompt.s"
MB = 1 << 20
WS_KVT, WS_YT, WS_H, WS_HN, WS_WINT, WS_WOUTT = 0, 2*MB, 4*MB, 6*MB, 8*MB, 10*MB
WS_Z, WS_Z2T, WS_U = 12*MB, 20*MB, 24*MB
SD = 2048*448*2
ARG = dict(q=0, k=8, v=16, shk=24, ssmk=32, ssmD=40, x=48, win=56, wsp=64, bsp=72, wout=80, out=88, dbg=96, ws=104)

L = []
def e(s): L.append("    " + s)
def lab(s): L.append(s + ":")
launches = []
descs = []

def kstart(name, grid, lds, nwg_guard):
    launches.append(f"; @launch kernel={name} grid=({grid},1,1) block=(256,1,1) lds={lds}")
    L.append(f".globl {name}\n.p2align 8\n.type {name},@function\n{name}:")
    e(f"s_cmp_ge_u32 s2, {nwg_guard}")
    e(f"s_cbranch_scc1 {name}_end")

def kend(name, vgpr):
    lab(f"{name}_end")
    e("s_endpgm")
    v = (vgpr + 3)//4*4
    descs.append(f""".p2align 6
.amdhsa_kernel {name}
  .amdhsa_next_free_vgpr {v}
  .amdhsa_next_free_sgpr 102
  .amdhsa_accum_offset {v}
  .amdhsa_group_segment_fixed_size 0
  .amdhsa_kernarg_size 112
  .amdhsa_user_sgpr_count 2
  .amdhsa_user_sgpr_kernarg_segment_ptr 1
  .amdhsa_system_sgpr_workgroup_id_x 1
.end_amdhsa_kernel""")

def srd(s, arg, off, size):
    e(f"s_load_dwordx2 s[96:97], s[0:1], {ARG[arg]}")
    e("s_waitcnt lgkmcnt(0)")
    e(f"s_add_u32 s{s}, s96, {off}")
    e(f"s_addc_u32 s{s+1}, s97, 0")
    e(f"s_mov_b32 s{s+2}, {size}")
    e(f"s_mov_b32 s{s+3}, 0x00020000")

def rnd(v, t):
    e(f"v_cvt_pk_bf16_f32 v{t}, v{v}, v{v}")
    e(f"v_lshlrev_b32 v{v}, 16, v{t}")

def wave_sum(v, t):
    for off in (0x041F, 0x081F, 0x101F, 0x201F, 0x401F):
        e(f"ds_swizzle_b32 v{t}, v{v} offset:{off:#x}")
        e("s_waitcnt lgkmcnt(0)")
        e(f"v_add_f32 v{v}, v{v}, v{t}")
    e("s_nop 1")
    e(f"v_readlane_b32 s98, v{v}, 0")
    e(f"v_readlane_b32 s99, v{v}, 32")
    e("s_nop 3")
    e(f"v_mov_b32 v{v}, s98")
    e(f"v_add_f32 v{v}, s99, v{v}")

def k_prep():
    n = "prep_kernel"
    kstart(n, 518, 0, 518)
    e("v_and_b32 v1, 63, v0")
    e("v_lshrrev_b32 v2, 6, v0")
    e(f"s_cmp_ge_u32 s2, 224")
    e(f"s_cbranch_scc1 prep_tr")
    srd(8, 'k', 0, SD); srd(12, 'v', 0, SD); srd(16, 'shk', 0, 448*8); srd(20, 'ws', WS_KVT, SD)
    e("s_and_b32 s4, s2, 31")
    e("s_lshr_b32 s5, s2, 5")
    e("s_lshl_b32 s4, s4, 6")
    e("s_lshl_b32 s5, s5, 6")
    e("v_add_u32 v3, s5, v1")
    e("v_lshlrev_b32 v4, 4, v2")
    e("v_add_u32 v4, s4, v4")
    e("v_lshlrev_b32 v5, 3, v3")
    e("buffer_load_dwordx2 v[6:7], v5, s[16:19], 0 offen")
    e("v_lshlrev_b32 v8, 1, v3")
    for i in range(19):
        e(f"v_add_u32 v9, {i-3}, v4" if i >= 3 else f"v_subrev_u32 v9, {3-i}, v4")
        e("v_max_i32 v10, 0, v9")
        e("v_mul_u32_u24 v10, 896, v10")
        e("v_add_u32 v10, v10, v8")
        e(f"buffer_load_ushort v{20+i}, v10, s[8:11], 0 offen")
        if i >= 3:
            e(f"buffer_load_ushort v{40+i-3}, v10, s[12:15], 0 offen")
    e("s_waitcnt vmcnt(0)")
    for i in range(3):
        e(f"v_subrev_u32 v9, {3-i}, v4")
        e("v_cmp_le_i32 vcc, 0, v9")
        e("s_nop 1")
        e(f"v_cndmask_b32 v{20+i}, 0, v{20+i}, vcc")
    for i in range(19): e(f"v_lshlrev_b32 v{20+i}, 16, v{20+i}")
    for i in range(16): e(f"v_lshlrev_b32 v{40+i}, 16, v{40+i}")
    e("v_lshlrev_b32 v11, 16, v6")
    e("v_and_b32 v12, 0xffff0000, v6")
    e("v_lshlrev_b32 v13, 16, v7")
    e("v_and_b32 v14, 0xffff0000, v7")
    for i in range(16):
        e(f"v_mul_f32 v15, v{20+i}, v14"); rnd(15, 9)
        e(f"v_mul_f32 v16, v{21+i}, v13"); rnd(16, 9)
        e("v_add_f32 v15, v15, v16"); rnd(15, 9)
        e(f"v_mul_f32 v16, v{22+i}, v12"); rnd(16, 9)
        e("v_add_f32 v15, v15, v16"); rnd(15, 9)
        e(f"v_mul_f32 v16, v{23+i}, v11"); rnd(16, 9)
        e("v_add_f32 v15, v15, v16"); rnd(15, 9)
        e(f"v_mul_f32 v{60+i}, v15, v{40+i}")
    for i in range(8): e(f"v_cvt_pk_bf16_f32 v{80+i}, v{60+2*i}, v{61+2*i}")
    e("v_lshlrev_b32 v9, 12, v3")
    e("v_lshlrev_b32 v10, 1, v4")
    e("v_add_u32 v9, v9, v10")
    e("buffer_store_dwordx4 v[80:83], v9, s[20:23], 0 offen")
    e("buffer_store_dwordx4 v[84:87], v9, s[20:23], 0 offen offset:16")
    e(f"s_branch {n}_end")
    lab("prep_tr")
    e("s_cmp_ge_u32 s2, 420")
    e("s_cbranch_scc1 prep_tr2")
    srd(8, 'win', 0, 448*1792*2); srd(20, 'ws', WS_WINT, 448*1792*2)
    e("s_sub_u32 s4, s2, 224")
    e("s_mul_i32 s5, s4, 9363"); e("s_lshr_b32 s5, s5, 16")
    e("s_mul_i32 s6, s5, 7"); e("s_sub_u32 s6, s4, s6")
    e("s_mov_b32 s24, 3584"); e("s_mov_b32 s25, 896")
    e("s_branch prep_trc")
    lab("prep_tr2")
    srd(8, 'wout', 0, 896*448*2); srd(20, 'ws', WS_WOUTT, 896*448*2)
    e("s_sub_u32 s4, s2, 420")
    e("s_mul_i32 s5, s4, 4682"); e("s_lshr_b32 s5, s5, 16")
    e("s_mul_i32 s6, s5, 14"); e("s_sub_u32 s6, s4, s6")
    e("s_mov_b32 s24, 896"); e("s_mov_b32 s25, 1792")
    lab("prep_trc")
    e("s_lshl_b32 s5, s5, 6"); e("s_lshl_b32 s6, s6, 6")
    e("v_add_u32 v3, s5, v1")
    e("v_lshlrev_b32 v4, 4, v2"); e("v_add_u32 v4, s6, v4")
    e("v_mul_lo_u32 v5, v4, s24")
    e("v_lshlrev_b32 v6, 1, v3"); e("v_add_u32 v5, v5, v6")
    for i in range(16):
        e(f"buffer_load_ushort v{20+i}, v5, s[8:11], 0 offen")
        e("v_add_u32 v5, s24, v5")
    e("s_waitcnt vmcnt(0)")
    for i in range(8):
        e(f"v_lshl_or_b32 v{40+i}, v{21+2*i}, 16, v{20+2*i}")
    e("v_mul_lo_u32 v5, v3, s25")
    e("v_lshlrev_b32 v6, 1, v4"); e("v_add_u32 v5, v5, v6")
    e("buffer_store_dwordx4 v[40:43], v5, s[20:23], 0 offen")
    e("buffer_store_dwordx4 v[44:47], v5, s[20:23], 0 offen offset:16")
    kend(n, 96)

XR, KC, KCS, YACC = 0, 10240, 4160, 10240+33280
def k_conv():
    n = "conv_kernel"
    kstart(n, 448, YACC+8192, 448)
    srd(8, 'ws', WS_KVT, SD); srd(12, 'ssmk', 0, 448*4096); srd(16, 'ssmD', 0, 896); srd(20, 'ws', WS_YT, SD)
    e("s_lshl_b32 s4, s2, 12")
    e("v_lshlrev_b32 v1, 4, v0")
    e("buffer_load_dwordx4 v[4:7], v1, s[8:11], s4 offen")
    e("buffer_load_dwordx4 v[8:11], v1, s[12:15], s4 offen")
    e("s_lshl_b32 s5, s2, 1")
    e("v_mov_b32 v2, s5")
    e("buffer_load_ushort v3, v2, s[16:19], 0 offen")
    e("v_mov_b32 v12, 0"); e("v_mov_b32 v13, 0"); e("v_mov_b32 v14, 0"); e("v_mov_b32 v15, 0")
    e(f"ds_write_b128 v1, v[12:15] offset:{XR}")
    e(f"ds_write_b128 v1, v[12:15] offset:{YACC}")
    e(f"ds_write_b128 v1, v[12:15] offset:{YACC+4096}")
    e("v_cmp_gt_u32 vcc, 64, v0")
    e("s_and_saveexec_b64 s[24:25], vcc")
    e(f"ds_write_b128 v1, v[12:15] offset:{XR+4096}")
    e("v_lshrrev_b32 v16, 2, v0"); e(f"v_mul_u32_u24 v16, {KCS}, v16")
    e("v_and_b32 v17, 3, v0"); e("v_lshlrev_b32 v17, 4, v17"); e("v_add_u32 v16, v16, v17")
    e("v_cmp_gt_u32 vcc, 32, v0")
    e("s_and_b64 exec, exec, vcc")
    e(f"ds_write_b128 v16, v[12:15] offset:{KC}")
    e("s_mov_b64 exec, s[24:25]")
    e("s_waitcnt vmcnt(0) lgkmcnt(0)")
    e("s_barrier")
    e("v_alignbit_b32 v12, v7, v7, 16"); e("v_alignbit_b32 v13, v6, v6, 16")
    e("v_alignbit_b32 v14, v5, v5, 16"); e("v_alignbit_b32 v15, v4, v4, 16")
    e("v_lshrrev_b32 v16, 2, v0"); e("v_add_u32 v16, 64, v16"); e("v_mul_u32_u24 v16, 80, v16")
    e("v_and_b32 v17, 3, v0"); e("v_lshlrev_b32 v17, 4, v17"); e("v_sub_u32 v17, 48, v17")
    e("v_add_u32 v16, v16, v17")
    e(f"ds_write_b128 v16, v[12:15] offset:{XR}")
    e("v_lshlrev_b32 v16, 4, v0")
    for i in range(8):
        src = 8 + i//2
        if i & 1: e(f"v_lshrrev_b32 v17, 16, v{src}")
        r = 17 if i & 1 else src
        for j in range(8):
            e(f"ds_write_b16 v16, v{r} offset:{KC + j*KCS + 2*(i+32-j)}")
    e("s_waitcnt lgkmcnt(0)")
    e("s_barrier")
    e("v_and_b32 v16, 31, v0")
    e("v_bfe_u32 v17, v0, 5, 1")
    e("v_lshrrev_b32 v18, 6, v0")
    e("v_add_u32 v19, 36, v16"); e("v_sub_u32 v19, v19, v18"); e("v_mul_u32_u24 v19, 80, v19")
    e("v_lshlrev_b32 v20, 4, v17"); e("v_add_u32 v19, v19, v20")
    e("v_add_u32 v21, 1, v16"); e("v_and_b32 v22, 7, v21"); e(f"v_mul_u32_u24 v22, {KCS}, v22")
    e("v_lshrrev_b32 v21, 3, v21"); e("v_add_u32 v21, v21, v17"); e("v_lshlrev_b32 v21, 4, v21")
    e("v_add_u32 v22, v22, v21"); e("v_lshlrev_b32 v21, 6, v18"); e("v_add_u32 v22, v22, v21")
    for i in range(32): e(f"v_mov_b32 v{64+i}, 0")
    for it in range(16):
        ao = 320*(15-it)
        for kk in range(2):
            e(f"ds_read_b128 v[{24+4*kk}:{27+4*kk}], v22 offset:{KC + 256*it + 32*kk}")
            e(f"ds_read_b128 v[{32+4*kk}:{35+4*kk}], v19 offset:{XR + ao + 32*kk}")
            if it < 8:
                e(f"ds_read_b128 v[{40+4*kk}:{43+4*kk}], v19 offset:{XR + ao - 2560 + 32*kk}")
        e("s_waitcnt lgkmcnt(0)")
        for kk in range(2):
            e(f"v_mfma_f32_32x32x16_bf16 v[64:79], v[{32+4*kk}:{35+4*kk}], v[{24+4*kk}:{27+4*kk}], v[64:79]")
            if it < 8:
                e(f"v_mfma_f32_32x32x16_bf16 v[80:95], v[{40+4*kk}:{43+4*kk}], v[{24+4*kk}:{27+4*kk}], v[80:95]")
    e("s_nop 15"); e("s_nop 3")
    e("v_lshlrev_b32 v20, 7, v17"); e("v_add_u32 v20, v20, v16"); e("v_lshlrev_b32 v20, 2, v20")
    for tile in range(2):
        for i in range(16):
            a = 32*tile + 8*(i >> 2) + (i & 3)
            e(f"ds_add_f32 v20, v{(80 if tile == 0 else 64)+i} offset:{YACC + 128*a}")
    e("s_waitcnt lgkmcnt(0)")
    e("s_barrier")
    e("v_lshlrev_b32 v20, 5, v0")
    e(f"ds_read_b128 v[24:27], v20 offset:{YACC}")
    e(f"ds_read_b128 v[28:31], v20 offset:{YACC+16}")
    e("v_lshlrev_b32 v3, 16, v3")
    e("s_waitcnt lgkmcnt(0)")
    for i in range(8):
        kvsrc = 4 + i//2
        if i & 1: e(f"v_and_b32 v33, 0xffff0000, v{kvsrc}")
        else: e(f"v_lshlrev_b32 v33, 16, v{kvsrc}")
        e("v_mul_f32 v33, v33, v3"); rnd(33, 34)
        rnd(24+i, 34)
        e(f"v_add_f32 v{24+i}, v{24+i}, v33")
    for i in range(4): e(f"v_cvt_pk_bf16_f32 v{36+i}, v{24+2*i}, v{25+2*i}")
    e("buffer_store_dwordx4 v[36:39], v1, s[20:23], s4 offen")
    kend(n, 96)

def ln_rows(xs, n, t0, outf):
    s, m, d, t = t0, t0+1, t0+2, t0+3
    e(f"v_mov_b32 v{s}, v{xs[0]}")
    for x in xs[1:]: e(f"v_add_f32 v{s}, v{s}, v{x}")
    wave_sum(s, t)
    e(f"v_mul_f32 v{m}, {hexf(1.0/n)}, v{s}")
    e(f"v_mov_b32 v{s}, 0")
    for x in xs:
        e(f"v_sub_f32 v{d}, v{x}, v{m}")
        e(f"v_fmac_f32 v{s}, v{d}, v{d}")
    wave_sum(s, t)
    e(f"v_mul_f32 v{s}, {hexf(1.0/n)}, v{s}"); rnd(s, t)
    rnd(m, t)
    e(f"v_add_f32 v{s}, {hexf(1e-5)}, v{s}"); rnd(s, t)
    e(f"v_sqrt_f32 v{s}, v{s}"); e("s_nop 0"); rnd(s, t)
    e(f"v_rcp_f32 v{d}, v{s}"); e("s_nop 0")
    e(f"v_fma_f32 v{t}, -v{s}, v{d}, 1.0"); e(f"v_fmac_f32 v{d}, v{t}, v{d}")
    for x in xs:
        e(f"v_sub_f32 v{x}, v{x}, v{m}"); rnd(x, t)
        e(f"v_mul_f32 v{x}, v{x}, v{d}"); rnd(x, t)

import struct
def hexf(f): return "0x%08x" % struct.unpack("<I", struct.pack("<f", f))[0]

def k_hln():
    n = "hln_kernel"
    YL = 912
    kstart(n, 128, 16*YL, 128)
    srd(8, 'ws', WS_YT, SD); srd(12, 'q', 0, SD); srd(16, 'ws', WS_H, SD); srd(20, 'ws', WS_HN, SD)
    e("s_lshl_b32 s4, s2, 5")
    e("v_lshrrev_b32 v1, 1, v0"); e("v_and_b32 v2, 1, v0")
    for p in range(4):
        e(f"v_add_u32 v3, {128*p}, v1")
        e("v_lshlrev_b32 v4, 12, v3"); e("v_lshlrev_b32 v5, 4, v2"); e("v_add_u32 v4, v4, v5")
        if p == 3:
            e("v_cmp_gt_u32 vcc, 448, v3"); e("s_and_saveexec_b64 s[24:25], vcc")
        e("buffer_load_dwordx4 v[8:11], v4, s[8:11], s4 offen")
        e("v_lshlrev_b32 v4, 1, v3"); e(f"v_mul_u32_u24 v5, {8*YL}, v2"); e("v_add_u32 v4, v4, v5")
        e("s_waitcnt vmcnt(0)")
        for i in range(8):
            if i & 1: e(f"v_lshrrev_b32 v12, 16, v{8+i//2}")
            e(f"ds_write_b16 v4, v{12 if i & 1 else 8+i//2} offset:{i*YL}")
        if p == 3: e("s_mov_b64 exec, s[24:25]")
    e("s_waitcnt lgkmcnt(0)"); e("s_barrier")
    e("v_and_b32 v1, 63, v0"); e("v_lshrrev_b32 v2, 6, v0")
    for r in range(4):
        e("v_lshlrev_b32 v3, 2, v2"); e(f"v_add_u32 v3, {r}, v3")
        e("s_lshl_b32 s5, s2, 4")
        e("v_add_u32 v4, s5, v3"); e("v_mul_u32_u24 v4, 896, v4"); e("v_lshlrev_b32 v5, 1, v1"); e("v_add_u32 v4, v4, v5")
        e(f"v_mul_u32_u24 v6, {YL}, v3"); e("v_add_u32 v6, v6, v5")
        for i in range(7):
            e(f"buffer_load_ushort v{10+i}, v4, s[12:15], 0 offen offset:{128*i}")
            e(f"ds_read_u16 v{20+i}, v6 offset:{128*i}")
        e("s_waitcnt vmcnt(0) lgkmcnt(0)")
        for i in range(7):
            e(f"v_lshlrev_b32 v{10+i}, 16, v{10+i}"); e(f"v_lshlrev_b32 v{20+i}, 16, v{20+i}")
            e(f"v_mov_b32 v{30+i}, v{10+i}")
        ln_rows([30+i for i in range(7)], 448, 40, None)
        for i in range(7):
            e(f"v_mul_f32 v{30+i}, v{30+i}, v{20+i}"); rnd(30+i, 44)
            e(f"v_add_f32 v{30+i}, v{30+i}, v{10+i}"); rnd(30+i, 44)
            e(f"v_lshrrev_b32 v45, 16, v{30+i}")
            e(f"buffer_store_short v45, v4, s[16:19], 0 offen offset:{128*i}")
        ln_rows([30+i for i in range(7)], 448, 40, None)
        for i in range(7):
            e(f"v_lshrrev_b32 v45, 16, v{30+i}")
            e(f"buffer_store_short v45, v4, s[20:23], 0 offen offset:{128*i}")
    kend(n, 64)

def k_ln2():
    n = "ln2_kernel"
    TL = 48
    kstart(n, 128, 896*TL, 128)
    srd(8, 'ws', WS_Z, 2048*3584); srd(12, 'ws', WS_Z2T, 896*4096)
    e("v_and_b32 v1, 63, v0"); e("v_lshrrev_b32 v2, 6, v0")
    for r in range(4):
        e("v_lshlrev_b32 v3, 2, v2"); e(f"v_add_u32 v3, {r}, v3")
        e("s_lshl_b32 s5, s2, 4")
        e("v_add_u32 v4, s5, v3"); e("v_mul_u32_u24 v4, 3584, v4"); e("v_lshlrev_b32 v5, 1, v1"); e("v_add_u32 v4, v4, v5")
        for i in range(14):
            e(f"buffer_load_ushort v{10+i}, v4, s[8:11], 0 offen offset:{1792+128*i}")
        e("s_waitcnt vmcnt(0)")
        for i in range(14): e(f"v_lshlrev_b32 v{10+i}, 16, v{10+i}")
        ln_rows([10+i for i in range(14)], 896, 40, None)
        e(f"v_mul_u32_u24 v6, {TL}, v1"); e("v_lshlrev_b32 v5, 1, v3"); e("v_add_u32 v6, v6, v5")
        for i in range(14):
            e(f"v_lshrrev_b32 v45, 16, v{10+i}")
            e(f"ds_write_b16 v6, v45 offset:{64*TL*i}")
    e("s_waitcnt lgkmcnt(0)"); e("s_barrier")
    e("s_lshl_b32 s4, s2, 5")
    e("v_lshrrev_b32 v1, 1, v0"); e("v_and_b32 v2, 1, v0")
    for p in range(7):
        e(f"v_add_u32 v3, {128*p}, v1")
        e(f"v_mul_u32_u24 v4, {TL}, v3"); e("v_lshlrev_b32 v5, 4, v2"); e("v_add_u32 v4, v4, v5")
        e("ds_read_b128 v[8:11], v4")
        e("v_lshlrev_b32 v4, 12, v3"); e("v_add_u32 v4, v4, v5")
        e("s_waitcnt lgkmcnt(0)")
        e("buffer_store_dwordx4 v[8:11], v4, s[12:15], s4 offen")
    kend(n, 64)

def gemm(n, nwg, A, B, K, BM, BN, WM, WN, decode, epi):
    RS = 144
    TM, TN = BM//WM//32, BN//WN//32
    ABUF, BBUF = BM*RS, BN*RS
    STG = ABUF + BBUF
    kstart(n, nwg, 2*STG, nwg)
    srd(8, A[0], A[1], A[2]); srd(12, B[0], B[1], B[2])
    decode()
    PA, PB = BM//32, BN//32
    e("v_lshrrev_b32 v1, 3, v0"); e("v_and_b32 v2, 7, v0"); e("v_lshlrev_b32 v2, 4, v2")
    e(f"s_mov_b32 s26, {A[3]}"); e(f"s_mov_b32 s27, {B[3]}")
    for p in range(PA):
        e(f"v_add_u32 v3, {32*p}, v1"); e("v_add_u32 v3, s4, v3"); e(f"v_mul_lo_u32 v3, v3, s26"); e(f"v_add_u32 v{4+p}, v3, v2")
    for p in range(PB):
        e(f"v_add_u32 v3, {32*p}, v1"); e("v_add_u32 v3, s5, v3"); e(f"v_mul_lo_u32 v3, v3, s27"); e(f"v_add_u32 v{8+p}, v3, v2")
    e(f"v_mul_u32_u24 v12, {RS}, v1"); e("v_add_u32 v12, v12, v2"); e(f"v_add_u32 v21, {ABUF}, v12")
    e("v_and_b32 v13, 31, v0"); e("v_bfe_u32 v14, v0, 5, 1"); e("v_lshrrev_b32 v15, 6, v0")
    e(f"v_and_b32 v16, {WM-1}, v15"); e(f"v_lshrrev_b32 v17, {WM.bit_length()-1}, v15")
    e(f"v_mul_u32_u24 v16, {32*TM}, v16"); e(f"v_mul_u32_u24 v17, {32*TN}, v17")
    e("v_lshlrev_b32 v3, 4, v14")
    e("v_add_u32 v18, v16, v13"); e(f"v_mul_u32_u24 v18, {RS}, v18"); e("v_add_u32 v18, v18, v3")
    e("v_add_u32 v19, v17, v13"); e(f"v_mul_u32_u24 v19, {RS}, v19"); e("v_add_u32 v19, v19, v3"); e(f"v_add_u32 v19, {ABUF}, v19")
    SA, SB = 24, 24+4*PA
    FA = 64; FB = FA + 8*TM
    ACC = 128
    for i in range(16*TM*TN): e(f"v_mov_b32 v{ACC+i}, 0")
    NS = K//64
    def gload(stage_is_sreg):
        for p in range(PA): e(f"buffer_load_dwordx4 v[{SA+4*p}:{SA+4*p+3}], v{4+p}, s[8:11], s6 offen")
        for p in range(PB): e(f"buffer_load_dwordx4 v[{SB+4*p}:{SB+4*p+3}], v{8+p}, s[12:15], s6 offen")
    def lwrite(buf):
        for p in range(PA): e(f"ds_write_b128 v12, v[{SA+4*p}:{SA+4*p+3}] offset:{buf*STG + 32*p*RS}")
        for p in range(PB): e(f"ds_write_b128 v21, v[{SB+4*p}:{SB+4*p+3}] offset:{buf*STG + 32*p*RS}")
    def rd(buf, kk, st):
        for i in range(TM): e(f"ds_read_b128 v[{FA+4*(2*i+st)}:{FA+4*(2*i+st)+3}], v18 offset:{buf*STG + 32*i*RS + 32*kk}")
        for j in range(TN): e(f"ds_read_b128 v[{FB+4*(2*j+st)}:{FB+4*(2*j+st)+3}], v19 offset:{buf*STG + 32*j*RS + 32*kk}")
    def compute(buf):
        rd(buf, 0, 0)
        for kk in range(4):
            st = kk & 1
            if kk < 3: rd(buf, kk+1, st ^ 1); e(f"s_waitcnt lgkmcnt({TM+TN})")
            else: e("s_waitcnt lgkmcnt(0)")
            for i in range(TM):
                for j in range(TN):
                    a = ACC + 16*(i*TN+j)
                    e(f"v_mfma_f32_32x32x16_bf16 v[{a}:{a+15}], v[{FA+4*(2*i+st)}:{FA+4*(2*i+st)+3}], v[{FB+4*(2*j+st)}:{FB+4*(2*j+st)+3}], v[{a}:{a+15}]")
    e("s_mov_b32 s6, 0")
    gload(0); e("s_waitcnt vmcnt(0)"); lwrite(0); e("s_waitcnt lgkmcnt(0)"); e("s_barrier")
    e("s_mov_b32 s7, 0")
    lab(f"{n}_loop")
    for buf in range(2):
        e("s_add_u32 s6, s6, 128")
        e("s_add_u32 s7, s7, 1")
        e(f"s_cmp_ge_u32 s7, {NS}")
        e(f"s_cbranch_scc1 {n}_nold{buf}")
        gload(0)
        lab(f"{n}_nold{buf}")
        compute(buf)
        e(f"s_cmp_ge_u32 s7, {NS}")
        e(f"s_cbranch_scc1 {n}_done")
        e("s_waitcnt vmcnt(0)"); lwrite(buf ^ 1); e("s_waitcnt lgkmcnt(0)"); e("s_barrier")
    e(f"s_branch {n}_loop")
    lab(f"{n}_done")
    e("s_nop 15"); e("s_nop 3")
    epi(ACC, TM, TN)
    kend(n, ACC + 16*TM*TN)

def gelu(v, t):
    e(f"v_mul_f32 v{t}, v{v}, v{v}")
    e(f"v_fma_f32 v{t}, v{t}, s30, 1.0"); e(f"v_mul_f32 v{t}, v{t}, v{v}")
    e(f"v_mul_f32 v{t}, s31, v{t}")
    e(f"v_exp_f32 v{t}, v{t}"); e("s_nop 0")
    e(f"v_add_f32 v{t}, 1.0, v{t}")
    e(f"v_rcp_f32 v{t}, v{t}"); e("s_nop 0")
    e(f"v_mul_f32 v{v}, v{v}, v{t}")

def k_gemm1():
    def decode():
        e("s_mul_i32 s5, s2, 4682"); e("s_lshr_b32 s5, s5, 16")
        e("s_mul_i32 s4, s5, 14"); e("s_sub_u32 s4, s2, s4")
        e("s_lshl_b32 s4, s4, 7"); e("s_lshl_b32 s5, s5, 7")
    def epi(ACC, TM, TN):
        srd(16, 'ws', WS_Z, 2048*3584)
        e(f"s_mov_b32 s30, {hexf(0.044715)}"); e(f"s_mov_b32 s31, {hexf(-2*0.7978845608028654*1.4426950408889634)}")
        for j in range(TN):
            e(f"v_add_u32 v3, v17, v13"); e(f"v_add_u32 v3, {32*j}, v3"); e("v_add_u32 v3, s5, v3"); e("v_mul_u32_u24 v3, 3584, v3")
            e("v_lshlrev_b32 v20, 2, v14"); e("v_add_u32 v20, v20, v16"); e("v_add_u32 v20, s4, v20"); e("v_lshlrev_b32 v20, 1, v20")
            e("v_add_u32 v3, v3, v20")
            for i in range(TM):
                for rq in range(4):
                    a = ACC + 16*(i*TN+j) + 4*rq
                    for r in range(4): rnd(a+r, 21); gelu(a+r, 21)
                    e(f"v_cvt_pk_bf16_f32 v22, v{a}, v{a+1}"); e(f"v_cvt_pk_bf16_f32 v23, v{a+2}, v{a+3}")
                    e(f"buffer_store_dwordx2 v[22:23], v3, s[16:19], 0 offen offset:{2*(32*i+8*rq)}")
    gemm("gemm1_kernel", 224, ('ws', WS_WINT, 1792*896, 896), ('ws', WS_HN, SD, 896), 448, 128, 128, 2, 2, decode, epi)

def k_gemm2():
    def decode():
        e("s_and_b32 s5, s2, 31"); e("s_lshr_b32 s4, s2, 5")
        e("s_lshl_b32 s4, s4, 7"); e("s_lshl_b32 s5, s5, 6")
    def epi(ACC, TM, TN):
        srd(16, 'ws', WS_Z, 2048*3584); srd(20, 'ws', WS_U, 2048*1792); srd(28, 'bsp', 0, 4096)
        for j in range(TN):
            e(f"v_add_u32 v3, v17, v13"); e(f"v_add_u32 v3, {32*j}, v3"); e("v_add_u32 v3, s5, v3")
            e("v_lshlrev_b32 v21, 1, v3")
            e("buffer_load_ushort v24, v21, s[28:31], 0 offen")
            e("v_lshlrev_b32 v20, 2, v14"); e("v_add_u32 v20, v20, v16"); e("v_add_u32 v20, s4, v20"); e("v_lshlrev_b32 v20, 1, v20")
            e("v_mul_u32_u24 v21, 3584, v3"); e("v_add_u32 v21, v21, v20")
            e("v_mul_u32_u24 v3, 1792, v3"); e("v_add_u32 v3, v3, v20")
            e("s_waitcnt vmcnt(0)"); e("v_lshlrev_b32 v24, 16, v24")
            for i in range(TM):
                for rq in range(4):
                    a = ACC + 16*(i*TN+j) + 4*rq
                    e(f"buffer_load_dwordx2 v[26:27], v21, s[16:19], 0 offen offset:{2*(32*i+8*rq)}")
                    for r in range(4): rnd(a+r, 25); e(f"v_add_f32 v{a+r}, v{a+r}, v24"); rnd(a+r, 25)
                    e("s_waitcnt vmcnt(0)")
                    for r in range(4):
                        src = 26 + r//2
                        e(f"v_and_b32 v28, 0xffff0000, v{src}" if r & 1 else f"v_lshlrev_b32 v28, 16, v{src}")
                        e(f"v_mul_f32 v{a+r}, v{a+r}, v28")
                    e(f"v_cvt_pk_bf16_f32 v22, v{a}, v{a+1}"); e(f"v_cvt_pk_bf16_f32 v23, v{a+2}, v{a+3}")
                    e(f"buffer_store_dwordx2 v[22:23], v3, s[20:23], 0 offen offset:{2*(32*i+8*rq)}")
    gemm("gemm2_kernel", 224, ('ws', WS_Z2T, 896*4096, 4096), ('wsp', 0, 2048*4096, 4096), 2048, 128, 64, 2, 2, decode, epi)

def k_gemm3():
    def decode():
        e("s_and_b32 s5, s2, 31"); e("s_lshr_b32 s4, s2, 5")
        e("s_lshl_b32 s4, s4, 6"); e("s_lshl_b32 s5, s5, 6")
    def epi(ACC, TM, TN):
        srd(16, 'ws', WS_H, SD); srd(20, 'out', 0, SD)
        for j in range(TN):
            e(f"v_add_u32 v3, v17, v13"); e(f"v_add_u32 v3, {32*j}, v3"); e("v_add_u32 v3, s5, v3")
            e("v_lshlrev_b32 v20, 2, v14"); e("v_add_u32 v20, v20, v16"); e("v_add_u32 v20, s4, v20"); e("v_lshlrev_b32 v20, 1, v20")
            e("v_mul_u32_u24 v3, 896, v3"); e("v_add_u32 v3, v3, v20")
            for i in range(TM):
                for rq in range(4):
                    a = ACC + 16*(i*TN+j) + 4*rq
                    e(f"buffer_load_dwordx2 v[26:27], v3, s[16:19], 0 offen offset:{2*(32*i+8*rq)}")
                    for r in range(4): rnd(a+r, 25)
                    e("s_waitcnt vmcnt(0)")
                    for r in range(4):
                        src = 26 + r//2
                        e(f"v_and_b32 v28, 0xffff0000, v{src}" if r & 1 else f"v_lshlrev_b32 v28, 16, v{src}")
                        e(f"v_add_f32 v{a+r}, v{a+r}, v28")
                    e(f"v_cvt_pk_bf16_f32 v22, v{a}, v{a+1}"); e(f"v_cvt_pk_bf16_f32 v23, v{a+2}, v{a+3}")
                    e(f"buffer_store_dwordx2 v[22:23], v3, s[20:23], 0 offen offset:{2*(32*i+8*rq)}")
    gemm("gemm3_kernel", 224, ('ws', WS_WOUTT, 448*1792, 1792), ('ws', WS_U, 2048*1792, 1792), 896, 64, 64, 2, 2, decode, epi)

k_prep(); k_conv(); k_hln(); k_gemm1(); k_ln2(); k_gemm2(); k_gemm3()
hdr = open(OUT + ".ref").read().split("; Override launch")[0]
txt = hdr + "\n".join(launches) + '\n.amdgcn_target "amdgcn-amd-amdhsa--gfx950"\n.text\n' + "\n".join(L) + '\n.p2align 8\n.section .rodata,"a"\n' + "\n".join(descs) + "\n"
open(OUT, "w").write(txt)
print("wrote", len(txt), "bytes")
```

```python
import sys
OUT = "sequential_preLN__ssm_conv_h3__mixer_gmlp__prompt.s"
MB = 1 << 20
WS_KVT, WS_YT, WS_H, WS_HN, WS_WINT, WS_WOUTT = 0, 2*MB, 4*MB, 6*MB, 8*MB, 10*MB
WS_Z, WS_Z2T, WS_U = 12*MB, 20*MB, 24*MB
SD = 2048*448*2
ARG = dict(q=0, k=8, v=16, shk=24, ssmk=32, ssmD=40, x=48, win=56, wsp=64, bsp=72, wout=80, out=88, dbg=96, ws=104)

L = []
def e(s): L.append("    " + s)
def lab(s): L.append(s + ":")
launches = []
descs = []

def kstart(name, grid, lds, nwg_guard, blk=256):
    launches.append(f"; @launch kernel={name} grid=({grid},1,1) block=({blk},1,1) lds={lds}")
    L.append(f".globl {name}\n.p2align 8\n.type {name},@function\n{name}:")
    e(f"s_cmp_ge_u32 s2, {nwg_guard}")
    e(f"s_cbranch_scc1 {name}_end")

def kend(name, vgpr):
    lab(f"{name}_end")
    e("s_endpgm")
    v = (vgpr + 3)//4*4
    descs.append(f""".p2align 6
.amdhsa_kernel {name}
  .amdhsa_next_free_vgpr {v}
  .amdhsa_next_free_sgpr 102
  .amdhsa_accum_offset {v}
  .amdhsa_group_segment_fixed_size 0
  .amdhsa_kernarg_size 112
  .amdhsa_user_sgpr_count 2
  .amdhsa_user_sgpr_kernarg_segment_ptr 1
  .amdhsa_system_sgpr_workgroup_id_x 1
.end_amdhsa_kernel""")

def srd(s, arg, off, size):
    e(f"s_load_dwordx2 s[96:97], s[0:1], {ARG[arg]}")
    e("s_waitcnt lgkmcnt(0)")
    e(f"s_add_u32 s{s}, s96, {off}")
    e(f"s_addc_u32 s{s+1}, s97, 0")
    e(f"s_mov_b32 s{s+2}, {size}")
    e(f"s_mov_b32 s{s+3}, 0x00020000")

def rnd(v, t):
    e(f"v_cvt_pk_bf16_f32 v{t}, v{v}, v{v}")
    e(f"v_lshlrev_b32 v{v}, 16, v{t}")

def wave_sum(v, t):
    for off in (0x041F, 0x081F, 0x101F, 0x201F, 0x401F):
        e(f"ds_swizzle_b32 v{t}, v{v} offset:{off:#x}")
        e("s_waitcnt lgkmcnt(0)")
        e(f"v_add_f32 v{v}, v{v}, v{t}")
    e("s_nop 1")
    e(f"v_readlane_b32 s98, v{v}, 0")
    e(f"v_readlane_b32 s99, v{v}, 32")
    e("s_nop 3")
    e(f"v_mov_b32 v{v}, s98")
    e(f"v_add_f32 v{v}, s99, v{v}")

def k_prep():
    n = "prep_kernel"
    kstart(n, 518, 0, 518)
    e("v_and_b32 v1, 63, v0")
    e("v_lshrrev_b32 v2, 6, v0")
    e(f"s_cmp_ge_u32 s2, 224")
    e(f"s_cbranch_scc1 prep_tr")
    srd(8, 'k', 0, SD); srd(12, 'v', 0, SD); srd(16, 'shk', 0, 448*8); srd(20, 'ws', WS_KVT, SD)
    e("s_and_b32 s4, s2, 31")
    e("s_lshr_b32 s5, s2, 5")
    e("s_lshl_b32 s4, s4, 6")
    e("s_lshl_b32 s5, s5, 6")
    e("v_add_u32 v3, s5, v1")
    e("v_lshlrev_b32 v4, 4, v2")
    e("v_add_u32 v4, s4, v4")
    e("v_lshlrev_b32 v5, 3, v3")
    e("buffer_load_dwordx2 v[6:7], v5, s[16:19], 0 offen")
    e("v_lshlrev_b32 v8, 1, v3")
    for i in range(19):
        e(f"v_add_u32 v9, {i-3}, v4" if i >= 3 else f"v_subrev_u32 v9, {3-i}, v4")
        e("v_max_i32 v10, 0, v9")
        e("v_mul_u32_u24 v10, 896, v10")
        e("v_add_u32 v10, v10, v8")
        e(f"buffer_load_ushort v{20+i}, v10, s[8:11], 0 offen")
        if i >= 3:
            e(f"buffer_load_ushort v{40+i-3}, v10, s[12:15], 0 offen")
    e("s_waitcnt vmcnt(0)")
    for i in range(3):
        e(f"v_subrev_u32 v9, {3-i}, v4")
        e("v_cmp_le_i32 vcc, 0, v9")
        e("s_nop 1")
        e(f"v_cndmask_b32 v{20+i}, 0, v{20+i}, vcc")
    for i in range(19): e(f"v_lshlrev_b32 v{20+i}, 16, v{20+i}")
    for i in range(16): e(f"v_lshlrev_b32 v{40+i}, 16, v{40+i}")
    e("v_lshlrev_b32 v11, 16, v6")
    e("v_and_b32 v12, 0xffff0000, v6")
    e("v_lshlrev_b32 v13, 16, v7")
    e("v_and_b32 v14, 0xffff0000, v7")
    for i in range(16):
        e(f"v_mul_f32 v15, v{20+i}, v14"); rnd(15, 9)
        e(f"v_mul_f32 v16, v{21+i}, v13"); rnd(16, 9)
        e("v_add_f32 v15, v15, v16"); rnd(15, 9)
        e(f"v_mul_f32 v16, v{22+i}, v12"); rnd(16, 9)
        e("v_add_f32 v15, v15, v16"); rnd(15, 9)
        e(f"v_mul_f32 v16, v{23+i}, v11"); rnd(16, 9)
        e("v_add_f32 v15, v15, v16"); rnd(15, 9)
        e(f"v_mul_f32 v{60+i}, v15, v{40+i}")
    for i in range(8): e(f"v_cvt_pk_bf16_f32 v{80+i}, v{60+2*i}, v{61+2*i}")
    e("v_lshlrev_b32 v9, 12, v3")
    e("v_lshlrev_b32 v10, 1, v4")
    e("v_add_u32 v9, v9, v10")
    e("buffer_store_dwordx4 v[80:83], v9, s[20:23], 0 offen")
    e("buffer_store_dwordx4 v[84:87], v9, s[20:23], 0 offen offset:16")
    e(f"s_branch {n}_end")
    lab("prep_tr")
    e("s_cmp_ge_u32 s2, 420")
    e("s_cbranch_scc1 prep_tr2")
    srd(8, 'win', 0, 448*1792*2); srd(20, 'ws', WS_WINT, 448*1792*2)
    e("s_sub_u32 s4, s2, 224")
    e("s_mul_i32 s5, s4, 9363"); e("s_lshr_b32 s5, s5, 16")
    e("s_mul_i32 s6, s5, 7"); e("s_sub_u32 s6, s4, s6")
    e("s_mov_b32 s24, 3584"); e("s_mov_b32 s25, 896")
    e("s_branch prep_trc")
    lab("prep_tr2")
    srd(8, 'wout', 0, 896*448*2); srd(20, 'ws', WS_WOUTT, 896*448*2)
    e("s_sub_u32 s4, s2, 420")
    e("s_mul_i32 s5, s4, 4682"); e("s_lshr_b32 s5, s5, 16")
    e("s_mul_i32 s6, s5, 14"); e("s_sub_u32 s6, s4, s6")
    e("s_mov_b32 s24, 896"); e("s_mov_b32 s25, 1792")
    lab("prep_trc")
    e("s_lshl_b32 s5, s5, 6"); e("s_lshl_b32 s6, s6, 6")
    e("v_add_u32 v3, s5, v1")
    e("v_lshlrev_b32 v4, 4, v2"); e("v_add_u32 v4, s6, v4")
    e("v_mul_lo_u32 v5, v4, s24")
    e("v_lshlrev_b32 v6, 1, v3"); e("v_add_u32 v5, v5, v6")
    for i in range(16):
        e(f"buffer_load_ushort v{20+i}, v5, s[8:11], 0 offen")
        e("v_add_u32 v5, s24, v5")
    e("s_waitcnt vmcnt(0)")
    for i in range(8):
        e(f"v_lshl_or_b32 v{40+i}, v{21+2*i}, 16, v{20+2*i}")
    e("v_mul_lo_u32 v5, v3, s25")
    e("v_lshlrev_b32 v6, 1, v4"); e("v_add_u32 v5, v5, v6")
    e("buffer_store_dwordx4 v[40:43], v5, s[20:23], 0 offen")
    e("buffer_store_dwordx4 v[44:47], v5, s[20:23], 0 offen offset:16")
    kend(n, 96)

XR, KC, KCS, YACC = 0, 10240, 4160, 10240+33280
def k_conv():
    n = "conv_kernel"
    kstart(n, 448, YACC+8192, 448)
    srd(8, 'ws', WS_KVT, SD); srd(12, 'ssmk', 0, 448*4096); srd(16, 'ssmD', 0, 896); srd(20, 'ws', WS_YT, SD)
    e("s_lshl_b32 s4, s2, 12")
    e("v_lshlrev_b32 v1, 4, v0")
    e("buffer_load_dwordx4 v[4:7], v1, s[8:11], s4 offen")
    e("buffer_load_dwordx4 v[48:51], v1, s[12:15], s4 offen")
    e("buffer_load_dwordx4 v[52:55], v1, s[12:15], s4 offen offset:16")
    e("s_lshl_b32 s5, s2, 1")
    e("v_mov_b32 v2, s5")
    e("buffer_load_ushort v3, v2, s[16:19], 0 offen")
    e("v_mov_b32 v12, 0"); e("v_mov_b32 v13, 0"); e("v_mov_b32 v14, 0"); e("v_mov_b32 v15, 0")
    e(f"ds_write_b128 v1, v[12:15] offset:{XR}")
    e(f"ds_write_b128 v1, v[12:15] offset:{YACC}")
    e(f"ds_write_b128 v1, v[12:15] offset:{YACC+4096}")
    e("v_cmp_gt_u32 vcc, 64, v0")
    e("s_and_saveexec_b64 s[24:25], vcc")
    e(f"ds_write_b128 v1, v[12:15] offset:{XR+4096}")
    e("v_lshrrev_b32 v16, 2, v0"); e(f"v_mul_u32_u24 v16, {KCS}, v16")
    e("v_and_b32 v17, 3, v0"); e("v_lshlrev_b32 v17, 4, v17"); e("v_add_u32 v16, v16, v17")
    e("v_cmp_gt_u32 vcc, 32, v0")
    e("s_and_b64 exec, exec, vcc")
    e(f"ds_write_b128 v16, v[12:15] offset:{KC}")
    e("s_mov_b64 exec, s[24:25]")
    e("s_waitcnt vmcnt(0) lgkmcnt(0)")
    e("s_barrier")
    e("v_alignbit_b32 v12, v7, v7, 16"); e("v_alignbit_b32 v13, v6, v6, 16")
    e("v_alignbit_b32 v14, v5, v5, 16"); e("v_alignbit_b32 v15, v4, v4, 16")
    e("v_lshrrev_b32 v16, 2, v0"); e("v_add_u32 v16, 64, v16"); e("v_mul_u32_u24 v16, 80, v16")
    e("v_and_b32 v17, 3, v0"); e("v_lshlrev_b32 v17, 4, v17"); e("v_sub_u32 v17, 48, v17")
    e("v_add_u32 v16, v16, v17")
    e(f"ds_write_b128 v16, v[12:15] offset:{XR}")
    e("v_lshlrev_b32 v16, 4, v0")
    for j in range(8):
        if j & 1:
            for c in range(4): e(f"v_alignbit_b32 v{56+c}, v{48+j//2+c+1}, v{48+j//2+c}, 16")
            e(f"ds_write_b128 v16, v[56:59] offset:{KC + j*KCS + 64}")
        elif (j//2) % 2 == 0:
            e(f"ds_write_b128 v16, v[{48+j//2}:{51+j//2}] offset:{KC + j*KCS + 64}")
        else:
            for c in range(4): e(f"v_mov_b32 v{60+c}, v{48+j//2+c}")
            e(f"ds_write_b128 v16, v[60:63] offset:{KC + j*KCS + 64}")
    e("v_cmp_eq_u32 vcc, 0, v0"); e("s_and_saveexec_b64 s[24:25], vcc")
    for i in range(7):
        if i & 1: e(f"v_lshrrev_b32 v17, 16, v{48+i//2}")
        for j in range(i+1, 8):
            e(f"ds_write_b16 v16, v{17 if i & 1 else 48+i//2} offset:{KC + j*KCS + 2*(32-j+i)}")
    e("s_mov_b64 exec, s[24:25]")
    e("s_waitcnt lgkmcnt(0)")
    e("s_barrier")
    e("v_and_b32 v16, 31, v0")
    e("v_bfe_u32 v17, v0, 5, 1")
    e("v_lshrrev_b32 v18, 6, v0")
    e("v_add_u32 v19, 36, v16"); e("v_sub_u32 v19, v19, v18"); e("v_mul_u32_u24 v19, 80, v19")
    e("v_lshlrev_b32 v20, 4, v17"); e("v_add_u32 v19, v19, v20")
    e("v_add_u32 v21, 1, v16"); e("v_and_b32 v22, 7, v21"); e(f"v_mul_u32_u24 v22, {KCS}, v22")
    e("v_lshrrev_b32 v21, 3, v21"); e("v_add_u32 v21, v21, v17"); e("v_lshlrev_b32 v21, 4, v21")
    e("v_add_u32 v22, v22, v21"); e("v_lshlrev_b32 v21, 6, v18"); e("v_add_u32 v22, v22, v21")
    for i in range(32): e(f"v_mov_b32 v{80+i}, 0")
    def crd(it):
        ao = 320*(15-it); b = 24*(it & 1) + 24
        for kk in range(2):
            e(f"ds_read_b128 v[{b+4*kk}:{b+3+4*kk}], v22 offset:{KC + 256*it + 32*kk}")
            e(f"ds_read_b128 v[{b+8+4*kk}:{b+11+4*kk}], v19 offset:{XR + ao + 32*kk}")
        if it < 8:
            for kk in range(2): e(f"ds_read_b128 v[{b+16+4*kk}:{b+19+4*kk}], v19 offset:{XR + ao - 2560 + 32*kk}")
        return 6 if it < 8 else 4
    crd(0)
    for it in range(16):
        b = 24*(it & 1) + 24
        if it < 15: e(f"s_waitcnt lgkmcnt({crd(it+1)})")
        else: e("s_waitcnt lgkmcnt(0)")
        for kk in range(2):
            e(f"v_mfma_f32_32x32x16_bf16 v[96:111], v[{b+8+4*kk}:{b+11+4*kk}], v[{b+4*kk}:{b+3+4*kk}], v[96:111]")
            if it < 8:
                e(f"v_mfma_f32_32x32x16_bf16 v[80:95], v[{b+16+4*kk}:{b+19+4*kk}], v[{b+4*kk}:{b+3+4*kk}], v[80:95]")
    e("s_nop 15"); e("s_nop 3")
    e("s_barrier")
    e("v_lshlrev_b32 v20, 7, v17"); e("v_add_u32 v20, v20, v16"); e("v_lshlrev_b32 v20, 2, v20")
    e("v_lshlrev_b32 v21, 13, v18"); e("v_add_u32 v20, v20, v21")
    for tile in range(2):
        for i in range(16):
            a = 32*tile + 8*(i >> 2) + (i & 3)
            e(f"ds_write_b32 v20, v{(80 if tile == 0 else 96)+i} offset:{KC + 128*a}")
    e("s_waitcnt lgkmcnt(0)")
    e("s_barrier")
    e("v_lshlrev_b32 v20, 5, v0")
    for w in range(4):
        e(f"ds_read_b128 v[{24+8*w}:{27+8*w}], v20 offset:{KC+8192*w}")
        e(f"ds_read_b128 v[{28+8*w}:{31+8*w}], v20 offset:{KC+8192*w+16}")
    e("s_waitcnt lgkmcnt(0)")
    for w in range(1, 4):
        for i in range(8): e(f"v_add_f32 v{24+i}, v{24+i}, v{24+8*w+i}")
    e("v_lshlrev_b32 v3, 16, v3")
    e("s_waitcnt lgkmcnt(0)")
    for i in range(8):
        kvsrc = 4 + i//2
        if i & 1: e(f"v_and_b32 v33, 0xffff0000, v{kvsrc}")
        else: e(f"v_lshlrev_b32 v33, 16, v{kvsrc}")
        e("v_mul_f32 v33, v33, v3"); rnd(33, 34)
        rnd(24+i, 34)
        e(f"v_add_f32 v{24+i}, v{24+i}, v33")
    for i in range(4): e(f"v_cvt_pk_bf16_f32 v{36+i}, v{24+2*i}, v{25+2*i}")
    e("buffer_store_dwordx4 v[36:39], v1, s[20:23], s4 offen")
    kend(n, 112)

def ln_rows(xs, n, t0, outf):
    s, m, d, t = t0, t0+1, t0+2, t0+3
    e(f"v_mov_b32 v{s}, v{xs[0]}")
    for x in xs[1:]: e(f"v_add_f32 v{s}, v{s}, v{x}")
    wave_sum(s, t)
    e(f"v_mul_f32 v{m}, {hexf(1.0/n)}, v{s}")
    e(f"v_mov_b32 v{s}, 0")
    for x in xs:
        e(f"v_sub_f32 v{d}, v{x}, v{m}")
        e(f"v_fmac_f32 v{s}, v{d}, v{d}")
    wave_sum(s, t)
    e(f"v_mul_f32 v{s}, {hexf(1.0/n)}, v{s}"); rnd(s, t)
    rnd(m, t)
    e(f"v_add_f32 v{s}, {hexf(1e-5)}, v{s}"); rnd(s, t)
    e(f"v_sqrt_f32 v{s}, v{s}"); e("s_nop 0"); rnd(s, t)
    e(f"v_rcp_f32 v{d}, v{s}"); e("s_nop 0")
    e(f"v_fma_f32 v{t}, -v{s}, v{d}, 1.0"); e(f"v_fmac_f32 v{d}, v{t}, v{d}")
    for x in xs:
        e(f"v_sub_f32 v{x}, v{x}, v{m}"); rnd(x, t)
        e(f"v_mul_f32 v{x}, v{x}, v{d}"); rnd(x, t)

import struct
def hexf(f): return "0x%08x" % struct.unpack("<I", struct.pack("<f", f))[0]

def k_hln():
    n = "hln_kernel"
    YL = 912
    kstart(n, 128, 16*YL, 128, 1024)
    srd(8, 'ws', WS_YT, SD); srd(12, 'q', 0, SD); srd(16, 'ws', WS_H, SD); srd(20, 'ws', WS_HN, SD)
    e("s_lshl_b32 s4, s2, 5")
    e("v_lshrrev_b32 v3, 1, v0"); e("v_and_b32 v2, 1, v0")
    e("v_lshlrev_b32 v4, 12, v3"); e("v_lshlrev_b32 v5, 4, v2"); e("v_add_u32 v4, v4, v5")
    e("v_cmp_gt_u32 vcc, 448, v3"); e("s_and_saveexec_b64 s[24:25], vcc")
    e("s_cbranch_execz hln_skip")
    e("buffer_load_dwordx4 v[8:11], v4, s[8:11], s4 offen")
    e("v_lshlrev_b32 v4, 1, v3"); e(f"v_mul_u32_u24 v5, {8*YL}, v2"); e("v_add_u32 v4, v4, v5")
    e("s_waitcnt vmcnt(0)")
    for i in range(8):
        if i & 1: e(f"v_lshrrev_b32 v12, 16, v{8+i//2}")
        e(f"ds_write_b16 v4, v{12 if i & 1 else 8+i//2} offset:{i*YL}")
    lab("hln_skip")
    e("s_mov_b64 exec, s[24:25]")
    e("v_and_b32 v1, 63, v0"); e("v_lshrrev_b32 v3, 6, v0")
    e("s_lshl_b32 s5, s2, 4")
    e("v_add_u32 v4, s5, v3"); e("v_mul_u32_u24 v4, 896, v4"); e("v_lshlrev_b32 v5, 1, v1"); e("v_add_u32 v4, v4, v5")
    e(f"v_mul_u32_u24 v6, {YL}, v3"); e("v_add_u32 v6, v6, v5")
    for i in range(7): e(f"buffer_load_ushort v{10+i}, v4, s[12:15], 0 offen offset:{128*i}")
    e("s_waitcnt lgkmcnt(0)"); e("s_barrier")
    for i in range(7): e(f"ds_read_u16 v{20+i}, v6 offset:{128*i}")
    e("s_waitcnt vmcnt(0) lgkmcnt(0)")
    for i in range(7):
        e(f"v_lshlrev_b32 v{10+i}, 16, v{10+i}"); e(f"v_lshlrev_b32 v{20+i}, 16, v{20+i}")
        e(f"v_mov_b32 v{30+i}, v{10+i}")
    ln_rows([30+i for i in range(7)], 448, 40, None)
    for i in range(7):
        e(f"v_mul_f32 v{30+i}, v{30+i}, v{20+i}"); rnd(30+i, 44)
        e(f"v_add_f32 v{30+i}, v{30+i}, v{10+i}"); rnd(30+i, 44)
        e(f"v_lshrrev_b32 v45, 16, v{30+i}")
        e(f"buffer_store_short v45, v4, s[16:19], 0 offen offset:{128*i}")
    ln_rows([30+i for i in range(7)], 448, 40, None)
    for i in range(7):
        e(f"v_lshrrev_b32 v45, 16, v{30+i}")
        e(f"buffer_store_short v45, v4, s[20:23], 0 offen offset:{128*i}")
    kend(n, 48)

def k_ln2():
    n = "ln2_kernel"
    TL = 48
    kstart(n, 128, 896*TL, 128, 1024)
    srd(8, 'ws', WS_Z, 2048*3584); srd(12, 'ws', WS_Z2T, 896*4096)
    e("v_and_b32 v1, 63, v0"); e("v_lshrrev_b32 v3, 6, v0")
    e("s_lshl_b32 s5, s2, 4")
    e("v_add_u32 v4, s5, v3"); e("v_mul_u32_u24 v4, 3584, v4"); e("v_lshlrev_b32 v5, 1, v1"); e("v_add_u32 v4, v4, v5")
    for i in range(14):
        e(f"buffer_load_ushort v{10+i}, v4, s[8:11], 0 offen offset:{1792+128*i}")
    e("s_waitcnt vmcnt(0)")
    for i in range(14): e(f"v_lshlrev_b32 v{10+i}, 16, v{10+i}")
    ln_rows([10+i for i in range(14)], 896, 40, None)
    e(f"v_mul_u32_u24 v6, {TL}, v1"); e("v_lshlrev_b32 v5, 1, v3"); e("v_add_u32 v6, v6, v5")
    for i in range(14):
        e(f"v_lshrrev_b32 v45, 16, v{10+i}")
        e(f"ds_write_b16 v6, v45 offset:{64*TL*i}")
    e("s_waitcnt lgkmcnt(0)"); e("s_barrier")
    e("s_lshl_b32 s4, s2, 5")
    e("v_lshrrev_b32 v1, 1, v0"); e("v_and_b32 v2, 1, v0")
    for p in range(2):
        e(f"v_add_u32 v3, {512*p}, v1")
        if p == 1:
            e("v_cmp_gt_u32 vcc, 896, v3"); e("s_and_saveexec_b64 s[24:25], vcc"); e("s_cbranch_execz ln2_kernel_end")
        e(f"v_mul_u32_u24 v4, {TL}, v3"); e("v_lshlrev_b32 v5, 4, v2"); e("v_add_u32 v4, v4, v5")
        e("ds_read_b128 v[8:11], v4")
        e("v_lshlrev_b32 v4, 12, v3"); e("v_add_u32 v4, v4, v5")
        e("s_waitcnt lgkmcnt(0)")
        e("buffer_store_dwordx4 v[8:11], v4, s[12:15], s4 offen")
    kend(n, 48)

def gemm(n, nwg, A, B, K, BM, BN, WM, WN, decode, epi):
    RS = 144
    TM, TN = BM//WM//32, BN//WN//32
    ABUF, BBUF = BM*RS, BN*RS
    STG = ABUF + BBUF
    kstart(n, nwg, 2*STG, nwg)
    srd(8, A[0], A[1], A[2]); srd(12, B[0], B[1], B[2])
    decode()
    PA, PB = BM//32, BN//32
    e("v_lshrrev_b32 v1, 3, v0"); e("v_and_b32 v2, 7, v0"); e("v_lshlrev_b32 v2, 4, v2")
    e(f"s_mov_b32 s26, {A[3]}"); e(f"s_mov_b32 s27, {B[3]}")
    for p in range(PA):
        e(f"v_add_u32 v3, {32*p}, v1"); e("v_add_u32 v3, s4, v3"); e(f"v_mul_lo_u32 v3, v3, s26"); e(f"v_add_u32 v{4+p}, v3, v2")
    for p in range(PB):
        e(f"v_add_u32 v3, {32*p}, v1"); e("v_add_u32 v3, s5, v3"); e(f"v_mul_lo_u32 v3, v3, s27"); e(f"v_add_u32 v{8+p}, v3, v2")
    e(f"v_mul_u32_u24 v12, {RS}, v1"); e("v_add_u32 v12, v12, v2"); e(f"v_add_u32 v21, {ABUF}, v12")
    e("v_and_b32 v13, 31, v0"); e("v_bfe_u32 v14, v0, 5, 1"); e("v_lshrrev_b32 v15, 6, v0")
    e(f"v_and_b32 v16, {WM-1}, v15"); e(f"v_lshrrev_b32 v17, {WM.bit_length()-1}, v15")
    e(f"v_mul_u32_u24 v16, {32*TM}, v16"); e(f"v_mul_u32_u24 v17, {32*TN}, v17")
    e("v_lshlrev_b32 v3, 4, v14")
    e("v_add_u32 v18, v16, v13"); e(f"v_mul_u32_u24 v18, {RS}, v18"); e("v_add_u32 v18, v18, v3")
    e("v_add_u32 v19, v17, v13"); e(f"v_mul_u32_u24 v19, {RS}, v19"); e("v_add_u32 v19, v19, v3"); e(f"v_add_u32 v19, {ABUF}, v19")
    SA, SB = 24, 24+4*PA
    FA = 24+8*(PA+PB); FB = FA + 8*TM
    assert FB + 8*TN <= 128
    ACC = 128
    for i in range(16*TM*TN): e(f"v_mov_b32 v{ACC+i}, 0")
    NS = K//64
    NP = PA+PB
    def gload(st):
        for p in range(PA): e(f"buffer_load_dwordx4 v[{SA+4*NP*st+4*p}:{SA+4*NP*st+4*p+3}], v{4+p}, s[8:11], s6 offen")
        for p in range(PB): e(f"buffer_load_dwordx4 v[{SB+4*NP*st+4*p}:{SB+4*NP*st+4*p+3}], v{8+p}, s[12:15], s6 offen")
        e("s_add_u32 s6, s6, 128")
    def lwrite(buf):
        st = buf
        for p in range(PA): e(f"ds_write_b128 v12, v[{SA+4*NP*st+4*p}:{SA+4*NP*st+4*p+3}] offset:{buf*STG + 32*p*RS}")
        for p in range(PB): e(f"ds_write_b128 v21, v[{SB+4*NP*st+4*p}:{SB+4*NP*st+4*p+3}] offset:{buf*STG + 32*p*RS}")
    def rd(buf, kk, st):
        for i in range(TM): e(f"ds_read_b128 v[{FA+4*(2*i+st)}:{FA+4*(2*i+st)+3}], v18 offset:{buf*STG + 32*i*RS + 32*kk}")
        for j in range(TN): e(f"ds_read_b128 v[{FB+4*(2*j+st)}:{FB+4*(2*j+st)+3}], v19 offset:{buf*STG + 32*j*RS + 32*kk}")
    def compute(buf):
        rd(buf, 0, 0)
        for kk in range(4):
            st = kk & 1
            if kk < 3: rd(buf, kk+1, st ^ 1); e(f"s_waitcnt lgkmcnt({TM+TN})")
            else: e("s_waitcnt lgkmcnt(0)")
            for i in range(TM):
                for j in range(TN):
                    a = ACC + 16*(i*TN+j)
                    e(f"v_mfma_f32_32x32x16_bf16 v[{a}:{a+15}], v[{FA+4*(2*i+st)}:{FA+4*(2*i+st)+3}], v[{FB+4*(2*j+st)}:{FB+4*(2*j+st)+3}], v[{a}:{a+15}]")
    e("s_mov_b32 s6, 0")
    gload(0); gload(1); e(f"s_waitcnt vmcnt({NP})"); lwrite(0); e("s_waitcnt lgkmcnt(0)"); e("s_barrier")
    e("s_mov_b32 s7, 0")
    lab(f"{n}_loop")
    for buf in range(2):
        e("s_add_u32 s7, s7, 1")
        e(f"s_cmp_ge_u32 s7, {NS}")
        e(f"s_cbranch_scc1 {n}_last")
        e(f"s_cmp_ge_u32 s7, {NS-1}")
        e(f"s_cbranch_scc1 {n}_nold{buf}")
        gload(buf)
        compute(buf)
        e(f"s_waitcnt vmcnt({NP})"); lwrite(buf ^ 1); e("s_waitcnt lgkmcnt(0)"); e("s_barrier")
    e(f"s_branch {n}_loop")
    for buf in range(2):
        lab(f"{n}_nold{buf}")
        compute(buf)
        e("s_waitcnt vmcnt(0)"); lwrite(buf ^ 1); e("s_waitcnt lgkmcnt(0)"); e("s_barrier")
        compute(buf ^ 1)
        e(f"s_branch {n}_done")
    lab(f"{n}_last")
    lab(f"{n}_done")
    e("s_nop 15"); e("s_nop 3")
    epi(ACC, TM, TN)
    kend(n, ACC + 16*TM*TN)

def gelu(v, t):
    e(f"v_mul_f32 v{t}, v{v}, v{v}")
    e(f"v_fma_f32 v{t}, v{t}, s30, 1.0"); e(f"v_mul_f32 v{t}, v{t}, v{v}")
    e(f"v_mul_f32 v{t}, s31, v{t}")
    e(f"v_exp_f32 v{t}, v{t}"); e("s_nop 0")
    e(f"v_add_f32 v{t}, 1.0, v{t}")
    e(f"v_rcp_f32 v{t}, v{t}"); e("s_nop 0")
    e(f"v_mul_f32 v{v}, v{v}, v{t}")

def k_gemm1():
    def decode():
        e("s_mul_i32 s5, s2, 4682"); e("s_lshr_b32 s5, s5, 16")
        e("s_mul_i32 s4, s5, 14"); e("s_sub_u32 s4, s2, s4")
        e("s_lshl_b32 s4, s4, 7"); e("s_lshl_b32 s5, s5, 7")
    def epi(ACC, TM, TN):
        srd(16, 'ws', WS_Z, 2048*3584)
        e(f"s_mov_b32 s30, {hexf(0.044715)}"); e(f"s_mov_b32 s31, {hexf(-2*0.7978845608028654*1.4426950408889634)}")
        for j in range(TN):
            e(f"v_add_u32 v3, v17, v13"); e(f"v_add_u32 v3, {32*j}, v3"); e("v_add_u32 v3, s5, v3"); e("v_mul_u32_u24 v3, 3584, v3")
            e("v_lshlrev_b32 v20, 2, v14"); e("v_add_u32 v20, v20, v16"); e("v_add_u32 v20, s4, v20"); e("v_lshlrev_b32 v20, 1, v20")
            e("v_add_u32 v3, v3, v20")
            for i in range(TM):
                for rq in range(4):
                    a = ACC + 16*(i*TN+j) + 4*rq
                    for r in range(4): rnd(a+r, 21); gelu(a+r, 21)
                    e(f"v_cvt_pk_bf16_f32 v22, v{a}, v{a+1}"); e(f"v_cvt_pk_bf16_f32 v23, v{a+2}, v{a+3}")
                    e(f"buffer_store_dwordx2 v[22:23], v3, s[16:19], 0 offen offset:{2*(32*i+8*rq)}")
    gemm("gemm1_kernel", 224, ('ws', WS_WINT, 1792*896, 896), ('ws', WS_HN, SD, 896), 448, 128, 128, 2, 2, decode, epi)

def k_gemm2():
    def decode():
        e("s_and_b32 s5, s2, 31"); e("s_lshr_b32 s4, s2, 5")
        e("s_lshl_b32 s4, s4, 7"); e("s_lshl_b32 s5, s5, 6")
    def epi(ACC, TM, TN):
        srd(16, 'ws', WS_Z, 2048*3584); srd(20, 'ws', WS_U, 2048*1792); srd(28, 'bsp', 0, 4096)
        for j in range(TN):
            e(f"v_add_u32 v3, v17, v13"); e(f"v_add_u32 v3, {32*j}, v3"); e("v_add_u32 v3, s5, v3")
            e("v_lshlrev_b32 v21, 1, v3")
            e("buffer_load_ushort v24, v21, s[28:31], 0 offen")
            e("v_lshlrev_b32 v20, 2, v14"); e("v_add_u32 v20, v20, v16"); e("v_add_u32 v20, s4, v20"); e("v_lshlrev_b32 v20, 1, v20")
            e("v_mul_u32_u24 v21, 3584, v3"); e("v_add_u32 v21, v21, v20")
            e("v_mul_u32_u24 v3, 1792, v3"); e("v_add_u32 v3, v3, v20")
            e("s_waitcnt vmcnt(0)"); e("v_lshlrev_b32 v24, 16, v24")
            for i in range(TM):
                for rq in range(4):
                    a = ACC + 16*(i*TN+j) + 4*rq
                    e(f"buffer_load_dwordx2 v[26:27], v21, s[16:19], 0 offen offset:{2*(32*i+8*rq)}")
                    for r in range(4): rnd(a+r, 25); e(f"v_add_f32 v{a+r}, v{a+r}, v24"); rnd(a+r, 25)
                    e("s_waitcnt vmcnt(0)")
                    for r in range(4):
                        src = 26 + r//2
                        e(f"v_and_b32 v28, 0xffff0000, v{src}" if r & 1 else f"v_lshlrev_b32 v28, 16, v{src}")
                        e(f"v_mul_f32 v{a+r}, v{a+r}, v28")
                    e(f"v_cvt_pk_bf16_f32 v22, v{a}, v{a+1}"); e(f"v_cvt_pk_bf16_f32 v23, v{a+2}, v{a+3}")
                    e(f"buffer_store_dwordx2 v[22:23], v3, s[20:23], 0 offen offset:{2*(32*i+8*rq)}")
    gemm("gemm2_kernel", 224, ('ws', WS_Z2T, 896*4096, 4096), ('wsp', 0, 2048*4096, 4096), 2048, 128, 64, 2, 2, decode, epi)

def k_gemm3():
    def decode():
        e("s_and_b32 s5, s2, 31"); e("s_lshr_b32 s4, s2, 5")
        e("s_lshl_b32 s4, s4, 6"); e("s_lshl_b32 s5, s5, 6")
    def epi(ACC, TM, TN):
        srd(16, 'ws', WS_H, SD); srd(20, 'out', 0, SD)
        for j in range(TN):
            e(f"v_add_u32 v3, v17, v13"); e(f"v_add_u32 v3, {32*j}, v3"); e("v_add_u32 v3, s5, v3")
            e("v_lshlrev_b32 v20, 2, v14"); e("v_add_u32 v20, v20, v16"); e("v_add_u32 v20, s4, v20"); e("v_lshlrev_b32 v20, 1, v20")
            e("v_mul_u32_u24 v3, 896, v3"); e("v_add_u32 v3, v3, v20")
            for i in range(TM):
                for rq in range(4):
                    a = ACC + 16*(i*TN+j) + 4*rq
                    e(f"buffer_load_dwordx2 v[26:27], v3, s[16:19], 0 offen offset:{2*(32*i+8*rq)}")
                    for r in range(4): rnd(a+r, 25)
                    e("s_waitcnt vmcnt(0)")
                    for r in range(4):
                        src = 26 + r//2
                        e(f"v_and_b32 v28, 0xffff0000, v{src}" if r & 1 else f"v_lshlrev_b32 v28, 16, v{src}")
                        e(f"v_add_f32 v{a+r}, v{a+r}, v28")
                    e(f"v_cvt_pk_bf16_f32 v22, v{a}, v{a+1}"); e(f"v_cvt_pk_bf16_f32 v23, v{a+2}, v{a+3}")
                    e(f"buffer_store_dwordx2 v[22:23], v3, s[20:23], 0 offen offset:{2*(32*i+8*rq)}")
    gemm("gemm3_kernel", 224, ('ws', WS_WOUTT, 448*1792, 1792), ('ws', WS_U, 2048*1792, 1792), 896, 64, 64, 2, 2, decode, epi)

k_prep(); k_conv(); k_hln(); k_gemm1(); k_ln2(); k_gemm2(); k_gemm3()
hdr = open(OUT + ".ref").read().split("; Override launch")[0]
txt = hdr + "\n".join(launches) + '\n.amdgcn_target "amdgcn-amd-amdhsa--gfx950"\n.text\n' + "\n".join(L) + '\n.p2align 8\n.section .rodata,"a"\n' + "\n".join(descs) + "\n"
open(OUT, "w").write(txt)
print("wrote", len(txt), "bytes")
```

```python
import sys
OUT = "sequential_preLN__ssm_conv_h3__mixer_gmlp__prompt.s"
MB = 1 << 20
WS_KVT, WS_YT, WS_H, WS_HN, WS_WINT, WS_WOUTT = 0, 2*MB, 4*MB, 6*MB, 8*MB, 10*MB
WS_Z, WS_Z2T, WS_U = 12*MB, 20*MB, 24*MB
SD = 2048*448*2
ARG = dict(q=0, k=8, v=16, shk=24, ssmk=32, ssmD=40, x=48, win=56, wsp=64, bsp=72, wout=80, out=88, dbg=96, ws=104)

L = []
def e(s): L.append("    " + s)
def lab(s): L.append(s + ":")
launches = []
descs = []

def kstart(name, grid, lds, nwg_guard, blk=256):
    launches.append(f"; @launch kernel={name} grid=({grid},1,1) block=({blk},1,1) lds={lds}")
    L.append(f".globl {name}\n.p2align 8\n.type {name},@function\n{name}:")
    e(f"s_cmp_ge_u32 s2, {nwg_guard}")
    e(f"s_cbranch_scc1 {name}_end")

def kend(name, vgpr):
    lab(f"{name}_end")
    e("s_endpgm")
    v = (vgpr + 3)//4*4
    descs.append(f""".p2align 6
.amdhsa_kernel {name}
  .amdhsa_next_free_vgpr {v}
  .amdhsa_next_free_sgpr 102
  .amdhsa_accum_offset {v}
  .amdhsa_group_segment_fixed_size 0
  .amdhsa_kernarg_size 112
  .amdhsa_user_sgpr_count 2
  .amdhsa_user_sgpr_kernarg_segment_ptr 1
  .amdhsa_system_sgpr_workgroup_id_x 1
.end_amdhsa_kernel""")

def srd(s, arg, off, size):
    e(f"s_load_dwordx2 s[96:97], s[0:1], {ARG[arg]}")
    e("s_waitcnt lgkmcnt(0)")
    e(f"s_add_u32 s{s}, s96, {off}")
    e(f"s_addc_u32 s{s+1}, s97, 0")
    e(f"s_mov_b32 s{s+2}, {size}")
    e(f"s_mov_b32 s{s+3}, 0x00020000")

def rnd(v, t):
    e(f"v_cvt_pk_bf16_f32 v{t}, v{v}, v{v}")
    e(f"v_lshlrev_b32 v{v}, 16, v{t}")

def wave_sum(v, t):
    for off in (0x041F, 0x081F, 0x101F, 0x201F, 0x401F):
        e(f"ds_swizzle_b32 v{t}, v{v} offset:{off:#x}")
        e("s_waitcnt lgkmcnt(0)")
        e(f"v_add_f32 v{v}, v{v}, v{t}")
    e("s_nop 1")
    e(f"v_readlane_b32 s98, v{v}, 0")
    e(f"v_readlane_b32 s99, v{v}, 32")
    e("s_nop 3")
    e(f"v_mov_b32 v{v}, s98")
    e(f"v_add_f32 v{v}, s99, v{v}")

def k_prep():
    n = "prep_kernel"
    kstart(n, 518, 0, 518)
    e("v_and_b32 v1, 63, v0")
    e("v_lshrrev_b32 v2, 6, v0")
    e(f"s_cmp_ge_u32 s2, 224")
    e(f"s_cbranch_scc1 prep_tr")
    srd(8, 'k', 0, SD); srd(12, 'v', 0, SD); srd(16, 'shk', 0, 448*8); srd(20, 'ws', WS_KVT, SD)
    e("s_and_b32 s4, s2, 31")
    e("s_lshr_b32 s5, s2, 5")
    e("s_lshl_b32 s4, s4, 6")
    e("s_lshl_b32 s5, s5, 6")
    e("v_add_u32 v3, s5, v1")
    e("v_lshlrev_b32 v4, 4, v2")
    e("v_add_u32 v4, s4, v4")
    e("v_lshlrev_b32 v5, 3, v3")
    e("buffer_load_dwordx2 v[6:7], v5, s[16:19], 0 offen")
    e("v_lshlrev_b32 v8, 1, v3")
    for i in range(19):
        e(f"v_add_u32 v9, {i-3}, v4" if i >= 3 else f"v_subrev_u32 v9, {3-i}, v4")
        e("v_max_i32 v10, 0, v9")
        e("v_mul_u32_u24 v10, 896, v10")
        e("v_add_u32 v10, v10, v8")
        e(f"buffer_load_ushort v{20+i}, v10, s[8:11], 0 offen")
        if i >= 3:
            e(f"buffer_load_ushort v{40+i-3}, v10, s[12:15], 0 offen")
    e("s_waitcnt vmcnt(0)")
    for i in range(3):
        e(f"v_subrev_u32 v9, {3-i}, v4")
        e("v_cmp_le_i32 vcc, 0, v9")
        e("s_nop 1")
        e(f"v_cndmask_b32 v{20+i}, 0, v{20+i}, vcc")
    for i in range(19): e(f"v_lshlrev_b32 v{20+i}, 16, v{20+i}")
    for i in range(16): e(f"v_lshlrev_b32 v{40+i}, 16, v{40+i}")
    e("v_lshlrev_b32 v11, 16, v6")
    e("v_and_b32 v12, 0xffff0000, v6")
    e("v_lshlrev_b32 v13, 16, v7")
    e("v_and_b32 v14, 0xffff0000, v7")
    for i in range(16):
        e(f"v_mul_f32 v15, v{20+i}, v14"); rnd(15, 9)
        e(f"v_mul_f32 v16, v{21+i}, v13"); rnd(16, 9)
        e("v_add_f32 v15, v15, v16"); rnd(15, 9)
        e(f"v_mul_f32 v16, v{22+i}, v12"); rnd(16, 9)
        e("v_add_f32 v15, v15, v16"); rnd(15, 9)
        e(f"v_mul_f32 v16, v{23+i}, v11"); rnd(16, 9)
        e("v_add_f32 v15, v15, v16"); rnd(15, 9)
        e(f"v_mul_f32 v{60+i}, v15, v{40+i}")
    for i in range(8): e(f"v_cvt_pk_bf16_f32 v{80+i}, v{60+2*i}, v{61+2*i}")
    e("v_lshlrev_b32 v9, 12, v3")
    e("v_lshlrev_b32 v10, 1, v4")
    e("v_add_u32 v9, v9, v10")
    e("buffer_store_dwordx4 v[80:83], v9, s[20:23], 0 offen")
    e("buffer_store_dwordx4 v[84:87], v9, s[20:23], 0 offen offset:16")
    e(f"s_branch {n}_end")
    lab("prep_tr")
    e("s_cmp_ge_u32 s2, 420")
    e("s_cbranch_scc1 prep_tr2")
    srd(8, 'win', 0, 448*1792*2); srd(20, 'ws', WS_WINT, 448*1792*2)
    e("s_sub_u32 s4, s2, 224")
    e("s_mul_i32 s5, s4, 9363"); e("s_lshr_b32 s5, s5, 16")
    e("s_mul_i32 s6, s5, 7"); e("s_sub_u32 s6, s4, s6")
    e("s_mov_b32 s24, 3584"); e("s_mov_b32 s25, 896")
    e("s_branch prep_trc")
    lab("prep_tr2")
    srd(8, 'wout', 0, 896*448*2); srd(20, 'ws', WS_WOUTT, 896*448*2)
    e("s_sub_u32 s4, s2, 420")
    e("s_mul_i32 s5, s4, 4682"); e("s_lshr_b32 s5, s5, 16")
    e("s_mul_i32 s6, s5, 14"); e("s_sub_u32 s6, s4, s6")
    e("s_mov_b32 s24, 896"); e("s_mov_b32 s25, 1792")
    lab("prep_trc")
    e("s_lshl_b32 s5, s5, 6"); e("s_lshl_b32 s6, s6, 6")
    e("v_add_u32 v3, s5, v1")
    e("v_lshlrev_b32 v4, 4, v2"); e("v_add_u32 v4, s6, v4")
    e("v_mul_lo_u32 v5, v4, s24")
    e("v_lshlrev_b32 v6, 1, v3"); e("v_add_u32 v5, v5, v6")
    for i in range(16):
        e(f"buffer_load_ushort v{20+i}, v5, s[8:11], 0 offen")
        e("v_add_u32 v5, s24, v5")
    e("s_waitcnt vmcnt(0)")
    for i in range(8):
        e(f"v_lshl_or_b32 v{40+i}, v{21+2*i}, 16, v{20+2*i}")
    e("v_mul_lo_u32 v5, v3, s25")
    e("v_lshlrev_b32 v6, 1, v4"); e("v_add_u32 v5, v5, v6")
    e("buffer_store_dwordx4 v[40:43], v5, s[20:23], 0 offen")
    e("buffer_store_dwordx4 v[44:47], v5, s[20:23], 0 offen offset:16")
    kend(n, 96)

XR, KC, KCS, YACC = 0, 10240, 4160, 10240+33280
def k_conv():
    n = "conv_kernel"
    kstart(n, 448, YACC+8192, 448)
    srd(8, 'ws', WS_KVT, SD); srd(12, 'ssmk', 0, 448*4096); srd(16, 'ssmD', 0, 896); srd(20, 'ws', WS_YT, SD)
    e("s_lshl_b32 s4, s2, 12")
    e("v_lshlrev_b32 v1, 4, v0")
    e("buffer_load_dwordx4 v[4:7], v1, s[8:11], s4 offen")
    e("buffer_load_dwordx4 v[48:51], v1, s[12:15], s4 offen")
    e("buffer_load_dwordx4 v[52:55], v1, s[12:15], s4 offen offset:16")
    e("s_lshl_b32 s5, s2, 1")
    e("v_mov_b32 v2, s5")
    e("buffer_load_ushort v3, v2, s[16:19], 0 offen")
    e("v_mov_b32 v12, 0"); e("v_mov_b32 v13, 0"); e("v_mov_b32 v14, 0"); e("v_mov_b32 v15, 0")
    e(f"ds_write_b128 v1, v[12:15] offset:{XR}")
    e(f"ds_write_b128 v1, v[12:15] offset:{YACC}")
    e(f"ds_write_b128 v1, v[12:15] offset:{YACC+4096}")
    e("v_cmp_gt_u32 vcc, 64, v0")
    e("s_and_saveexec_b64 s[24:25], vcc")
    e(f"ds_write_b128 v1, v[12:15] offset:{XR+4096}")
    e("v_lshrrev_b32 v16, 2, v0"); e(f"v_mul_u32_u24 v16, {KCS}, v16")
    e("v_and_b32 v17, 3, v0"); e("v_lshlrev_b32 v17, 4, v17"); e("v_add_u32 v16, v16, v17")
    e("v_cmp_gt_u32 vcc, 32, v0")
    e("s_and_b64 exec, exec, vcc")
    e(f"ds_write_b128 v16, v[12:15] offset:{KC}")
    e("s_mov_b64 exec, s[24:25]")
    e("s_waitcnt vmcnt(0) lgkmcnt(0)")
    e("s_barrier")
    e("v_alignbit_b32 v12, v7, v7, 16"); e("v_alignbit_b32 v13, v6, v6, 16")
    e("v_alignbit_b32 v14, v5, v5, 16"); e("v_alignbit_b32 v15, v4, v4, 16")
    e("v_lshrrev_b32 v16, 2, v0"); e("v_add_u32 v16, 64, v16"); e("v_mul_u32_u24 v16, 80, v16")
    e("v_and_b32 v17, 3, v0"); e("v_lshlrev_b32 v17, 4, v17"); e("v_sub_u32 v17, 48, v17")
    e("v_add_u32 v16, v16, v17")
    e(f"ds_write_b128 v16, v[12:15] offset:{XR}")
    e("v_lshlrev_b32 v16, 4, v0")
    for j in range(8):
        if j & 1:
            for c in range(4): e(f"v_alignbit_b32 v{56+c}, v{48+j//2+c+1}, v{48+j//2+c}, 16")
            e(f"ds_write_b128 v16, v[56:59] offset:{KC + j*KCS + 64}")
        elif (j//2) % 2 == 0:
            e(f"ds_write_b128 v16, v[{48+j//2}:{51+j//2}] offset:{KC + j*KCS + 64}")
        else:
            for c in range(4): e(f"v_mov_b32 v{60+c}, v{48+j//2+c}")
            e(f"ds_write_b128 v16, v[60:63] offset:{KC + j*KCS + 64}")
    e("v_cmp_eq_u32 vcc, 0, v0"); e("s_and_saveexec_b64 s[24:25], vcc")
    for i in range(7):
        if i & 1: e(f"v_lshrrev_b32 v17, 16, v{48+i//2}")
        for j in range(i+1, 8):
            e(f"ds_write_b16 v16, v{17 if i & 1 else 48+i//2} offset:{KC + j*KCS + 2*(32-j+i)}")
    e("s_mov_b64 exec, s[24:25]")
    e("s_waitcnt lgkmcnt(0)")
    e("s_barrier")
    e("v_and_b32 v16, 31, v0")
    e("v_bfe_u32 v17, v0, 5, 1")
    e("v_lshrrev_b32 v18, 6, v0")
    e("v_add_u32 v19, 36, v16"); e("v_sub_u32 v19, v19, v18"); e("v_mul_u32_u24 v19, 80, v19")
    e("v_lshlrev_b32 v20, 4, v17"); e("v_add_u32 v19, v19, v20")
    e("v_add_u32 v21, 1, v16"); e("v_and_b32 v22, 7, v21"); e(f"v_mul_u32_u24 v22, {KCS}, v22")
    e("v_lshrrev_b32 v21, 3, v21"); e("v_add_u32 v21, v21, v17"); e("v_lshlrev_b32 v21, 4, v21")
    e("v_add_u32 v22, v22, v21"); e("v_lshlrev_b32 v21, 6, v18"); e("v_add_u32 v22, v22, v21")
    for i in range(32): e(f"v_mov_b32 v{80+i}, 0")
    def crd(it):
        ao = 320*(15-it); b = 24*(it & 1) + 24
        for kk in range(2):
            e(f"ds_read_b128 v[{b+4*kk}:{b+3+4*kk}], v22 offset:{KC + 256*it + 32*kk}")
            e(f"ds_read_b128 v[{b+8+4*kk}:{b+11+4*kk}], v19 offset:{XR + ao + 32*kk}")
        if it < 8:
            for kk in range(2): e(f"ds_read_b128 v[{b+16+4*kk}:{b+19+4*kk}], v19 offset:{XR + ao - 2560 + 32*kk}")
        return 6 if it < 8 else 4
    crd(0)
    for it in range(16):
        b = 24*(it & 1) + 24
        if it < 15: e(f"s_waitcnt lgkmcnt({crd(it+1)})")
        else: e("s_waitcnt lgkmcnt(0)")
        for kk in range(2):
            e(f"v_mfma_f32_32x32x16_bf16 v[96:111], v[{b+8+4*kk}:{b+11+4*kk}], v[{b+4*kk}:{b+3+4*kk}], v[96:111]")
            if it < 8:
                e(f"v_mfma_f32_32x32x16_bf16 v[80:95], v[{b+16+4*kk}:{b+19+4*kk}], v[{b+4*kk}:{b+3+4*kk}], v[80:95]")
    e("s_nop 15"); e("s_nop 3")
    e("s_barrier")
    e("v_lshlrev_b32 v20, 7, v17"); e("v_add_u32 v20, v20, v16"); e("v_lshlrev_b32 v20, 2, v20")
    e("v_lshlrev_b32 v21, 13, v18"); e("v_add_u32 v20, v20, v21")
    for tile in range(2):
        for i in range(16):
            a = 32*tile + 8*(i >> 2) + (i & 3)
            e(f"ds_write_b32 v20, v{(80 if tile == 0 else 96)+i} offset:{KC + 128*a}")
    e("s_waitcnt lgkmcnt(0)")
    e("s_barrier")
    e("v_lshlrev_b32 v20, 5, v0")
    for w in range(4):
        e(f"ds_read_b128 v[{24+8*w}:{27+8*w}], v20 offset:{KC+8192*w}")
        e(f"ds_read_b128 v[{28+8*w}:{31+8*w}], v20 offset:{KC+8192*w+16}")
    e("s_waitcnt lgkmcnt(0)")
    for w in range(1, 4):
        for i in range(8): e(f"v_add_f32 v{24+i}, v{24+i}, v{24+8*w+i}")
    e("v_lshlrev_b32 v3, 16, v3")
    e("s_waitcnt lgkmcnt(0)")
    for i in range(8):
        kvsrc = 4 + i//2
        if i & 1: e(f"v_and_b32 v33, 0xffff0000, v{kvsrc}")
        else: e(f"v_lshlrev_b32 v33, 16, v{kvsrc}")
        e("v_mul_f32 v33, v33, v3"); rnd(33, 34)
        rnd(24+i, 34)
        e(f"v_add_f32 v{24+i}, v{24+i}, v33")
    for i in range(4): e(f"v_cvt_pk_bf16_f32 v{36+i}, v{24+2*i}, v{25+2*i}")
    e("buffer_store_dwordx4 v[36:39], v1, s[20:23], s4 offen")
    kend(n, 112)

def ln_rows(xs, n, t0, outf):
    s, m, d, t = t0, t0+1, t0+2, t0+3
    e(f"v_mov_b32 v{s}, v{xs[0]}")
    for x in xs[1:]: e(f"v_add_f32 v{s}, v{s}, v{x}")
    wave_sum(s, t)
    e(f"v_mul_f32 v{m}, {hexf(1.0/n)}, v{s}")
    e(f"v_mov_b32 v{s}, 0")
    for x in xs:
        e(f"v_sub_f32 v{d}, v{x}, v{m}")
        e(f"v_fmac_f32 v{s}, v{d}, v{d}")
    wave_sum(s, t)
    e(f"v_mul_f32 v{s}, {hexf(1.0/n)}, v{s}"); rnd(s, t)
    rnd(m, t)
    e(f"v_add_f32 v{s}, {hexf(1e-5)}, v{s}"); rnd(s, t)
    e(f"v_sqrt_f32 v{s}, v{s}"); e("s_nop 0"); rnd(s, t)
    e(f"v_rcp_f32 v{d}, v{s}"); e("s_nop 0")
    e(f"v_fma_f32 v{t}, -v{s}, v{d}, 1.0"); e(f"v_fmac_f32 v{d}, v{t}, v{d}")
    for x in xs:
        e(f"v_sub_f32 v{x}, v{x}, v{m}"); rnd(x, t)
        e(f"v_mul_f32 v{x}, v{x}, v{d}"); rnd(x, t)

import struct
def hexf(f): return "0x%08x" % struct.unpack("<I", struct.pack("<f", f))[0]

def k_hln():
    n = "hln_kernel"
    YL = 912
    kstart(n, 128, 16*YL, 128, 1024)
    srd(8, 'ws', WS_YT, SD); srd(12, 'q', 0, SD); srd(16, 'ws', WS_H, SD); srd(20, 'ws', WS_HN, SD)
    e("s_lshl_b32 s4, s2, 5")
    e("v_lshrrev_b32 v3, 1, v0"); e("v_and_b32 v2, 1, v0")
    e("v_lshlrev_b32 v4, 12, v3"); e("v_lshlrev_b32 v5, 4, v2"); e("v_add_u32 v4, v4, v5")
    e("v_cmp_gt_u32 vcc, 448, v3"); e("s_and_saveexec_b64 s[24:25], vcc")
    e("s_cbranch_execz hln_skip")
    e("buffer_load_dwordx4 v[8:11], v4, s[8:11], s4 offen")
    e("v_lshlrev_b32 v4, 1, v3"); e(f"v_mul_u32_u24 v5, {8*YL}, v2"); e("v_add_u32 v4, v4, v5")
    e("s_waitcnt vmcnt(0)")
    for i in range(8):
        if i & 1: e(f"v_lshrrev_b32 v12, 16, v{8+i//2}")
        e(f"ds_write_b16 v4, v{12 if i & 1 else 8+i//2} offset:{i*YL}")
    lab("hln_skip")
    e("s_mov_b64 exec, s[24:25]")
    e("v_and_b32 v1, 63, v0"); e("v_lshrrev_b32 v3, 6, v0")
    e("s_lshl_b32 s5, s2, 4")
    e("v_add_u32 v4, s5, v3"); e("v_mul_u32_u24 v4, 896, v4"); e("v_lshlrev_b32 v5, 1, v1"); e("v_add_u32 v4, v4, v5")
    e(f"v_mul_u32_u24 v6, {YL}, v3"); e("v_add_u32 v6, v6, v5")
    for i in range(7): e(f"buffer_load_ushort v{10+i}, v4, s[12:15], 0 offen offset:{128*i}")
    e("s_waitcnt lgkmcnt(0)"); e("s_barrier")
    for i in range(7): e(f"ds_read_u16 v{20+i}, v6 offset:{128*i}")
    e("s_waitcnt vmcnt(0) lgkmcnt(0)")
    for i in range(7):
        e(f"v_lshlrev_b32 v{10+i}, 16, v{10+i}"); e(f"v_lshlrev_b32 v{20+i}, 16, v{20+i}")
        e(f"v_mov_b32 v{30+i}, v{10+i}")
    ln_rows([30+i for i in range(7)], 448, 40, None)
    for i in range(7):
        e(f"v_mul_f32 v{30+i}, v{30+i}, v{20+i}"); rnd(30+i, 44)
        e(f"v_add_f32 v{30+i}, v{30+i}, v{10+i}"); rnd(30+i, 44)
        e(f"v_lshrrev_b32 v45, 16, v{30+i}")
        e(f"buffer_store_short v45, v4, s[16:19], 0 offen offset:{128*i}")
    ln_rows([30+i for i in range(7)], 448, 40, None)
    for i in range(7):
        e(f"v_lshrrev_b32 v45, 16, v{30+i}")
        e(f"buffer_store_short v45, v4, s[20:23], 0 offen offset:{128*i}")
    kend(n, 48)

def k_ln2():
    n = "ln2_kernel"
    TL = 48
    kstart(n, 128, 896*TL, 128, 1024)
    srd(8, 'ws', WS_Z, 2048*3584); srd(12, 'ws', WS_Z2T, 896*4096)
    e("v_and_b32 v1, 63, v0"); e("v_lshrrev_b32 v3, 6, v0")
    e("s_lshl_b32 s5, s2, 4")
    e("v_add_u32 v4, s5, v3"); e("v_mul_u32_u24 v4, 3584, v4"); e("v_lshlrev_b32 v5, 1, v1"); e("v_add_u32 v4, v4, v5")
    for i in range(14):
        e(f"buffer_load_ushort v{10+i}, v4, s[8:11], 0 offen offset:{1792+128*i}")
    e("s_waitcnt vmcnt(0)")
    for i in range(14): e(f"v_lshlrev_b32 v{10+i}, 16, v{10+i}")
    ln_rows([10+i for i in range(14)], 896, 40, None)
    e(f"v_mul_u32_u24 v6, {TL}, v1"); e("v_lshlrev_b32 v5, 1, v3"); e("v_add_u32 v6, v6, v5")
    for i in range(14):
        e(f"v_lshrrev_b32 v45, 16, v{10+i}")
        e(f"ds_write_b16 v6, v45 offset:{64*TL*i}")
    e("s_waitcnt lgkmcnt(0)"); e("s_barrier")
    e("s_lshl_b32 s4, s2, 5")
    e("v_lshrrev_b32 v1, 1, v0"); e("v_and_b32 v2, 1, v0")
    for p in range(2):
        e(f"v_add_u32 v3, {512*p}, v1")
        if p == 1:
            e("v_cmp_gt_u32 vcc, 896, v3"); e("s_and_saveexec_b64 s[24:25], vcc"); e("s_cbranch_execz ln2_kernel_end")
        e(f"v_mul_u32_u24 v4, {TL}, v3"); e("v_lshlrev_b32 v5, 4, v2"); e("v_add_u32 v4, v4, v5")
        e("ds_read_b128 v[8:11], v4")
        e("v_lshlrev_b32 v4, 12, v3"); e("v_add_u32 v4, v4, v5")
        e("s_waitcnt lgkmcnt(0)")
        e("buffer_store_dwordx4 v[8:11], v4, s[12:15], s4 offen")
    kend(n, 48)

def gemm(n, nwg, A, B, K, BM, BN, WM, WN, decode, epi):
    TM, TN = BM//WM//32, BN//WN//32
    ABUF, BBUF = BM*128, BN*128
    STG = ABUF + BBUF
    NI = (BM+BN)//32
    NIA = BM//32
    kstart(n, nwg, 3*STG, nwg)
    srd(8, A[0], A[1], A[2]); srd(12, B[0], B[1], B[2])
    decode()
    e(f"s_mov_b32 s26, {A[3]}"); e(f"s_mov_b32 s27, {B[3]}")
    e("v_lshrrev_b32 v15, 6, v0")
    e("v_and_b32 v1, 63, v0"); e("v_lshrrev_b32 v2, 3, v1"); e("v_and_b32 v3, 7, v1")
    e("s_nop 0"); e("v_readfirstlane_b32 s28, v15"); e("s_nop 3"); e("s_lshl_b32 s28, s28, 10")
    for i in range(NI):
        isA = i < NIA
        q = i if isA else i - NIA
        e("v_lshlrev_b32 v20, 3, v15"); e(f"v_add_u32 v20, {32*q}, v20"); e("v_add_u32 v20, v20, v2")
        e("v_bfe_u32 v21, v20, 1, 3"); e("v_xor_b32 v21, v21, v3"); e("v_lshlrev_b32 v21, 4, v21")
        e(f"v_add_u32 v20, s{4 if isA else 5}, v20"); e(f"v_mul_lo_u32 v20, v20, s{26 if isA else 27}")
        e(f"v_add_u32 v{24+i}, v20, v21")
    e("v_and_b32 v13, 31, v0"); e("v_bfe_u32 v14, v0, 5, 1")
    e(f"v_and_b32 v16, {WM-1}, v15"); e(f"v_lshrrev_b32 v17, {WM.bit_length()-1}, v15")
    e(f"v_mul_u32_u24 v16, {32*TM}, v16"); e(f"v_mul_u32_u24 v17, {32*TN}, v17")
    AR, BR = 40, 44
    for (reg, woff, base) in ((AR, 16, 0), (BR, 17, ABUF)):
        e(f"v_add_u32 v20, v{woff}, v13")
        e("v_bfe_u32 v21, v20, 1, 3")
        e("v_and_b32 v22, 1, v21"); e("v_xor_b32 v22, v22, v14"); e("v_lshlrev_b32 v22, 4, v22")
        e("v_lshlrev_b32 v20, 7, v20"); e("v_add_u32 v20, v20, v22"); e(f"v_add_u32 v20, {base}, v20")
        e("v_lshrrev_b32 v21, 1, v21")
        for kk in range(4):
            e(f"v_xor_b32 v22, {kk}, v21"); e("v_lshlrev_b32 v22, 5, v22"); e(f"v_add_u32 v{reg+kk}, v20, v22")
    FA = 48; FB = FA + 8*TM
    ACC = 96
    assert FB + 8*TN <= ACC
    for i in range(16*TM*TN): e(f"v_mov_b32 v{ACC+i}, 0")
    NS = K//64
    def dma():
        for i in range(NI):
            e(f"s_add_u32 m0, s29, {4096*i}")
            e("s_nop 0")
            e(f"buffer_load_dwordx4 v{24+i}, s[{8 if i < NIA else 12}:{11 if i < NIA else 15}], s6 offen lds")
        e("s_add_u32 s6, s6, 128")
        e(f"s_add_u32 s29, s29, {STG}")
        e(f"s_cmp_ge_u32 s29, s30")
        e(f"s_cselect_b32 s29, s28, s29")
    def rd(kk, st):
        for i in range(TM): e(f"ds_read_b128 v[{FA+4*(2*i+st)}:{FA+4*(2*i+st)+3}], v{AR+kk} offset:{4096*i}")
        for j in range(TN): e(f"ds_read_b128 v[{FB+4*(2*j+st)}:{FB+4*(2*j+st)+3}], v{BR+kk} offset:{4096*j}")
    e("s_mov_b32 s6, 0"); e("s_mov_b32 s29, s28"); e(f"s_add_u32 s30, s28, {3*STG}")
    e("s_mov_b32 s31, 0")
    e(f"s_mov_b32 s34, {-2*STG & 0xffffffff}"); e(f"s_mov_b32 s35, {STG}")
    dma(); dma()
    e(f"s_waitcnt vmcnt({NI})"); e("s_barrier")
    e("s_mov_b32 s7, 0")
    lab(f"{n}_loop")
    dma()
    rd(0, 0)
    for kk in range(4):
        st = kk & 1
        if kk < 3: rd(kk+1, st ^ 1); e(f"s_waitcnt lgkmcnt({TM+TN})")
        else: e("s_waitcnt lgkmcnt(0)")
        for i in range(TM):
            for j in range(TN):
                a = ACC + 16*(i*TN+j)
                e(f"v_mfma_f32_32x32x16_bf16 v[{a}:{a+15}], v[{FA+4*(2*i+st)}:{FA+4*(2*i+st)+3}], v[{FB+4*(2*j+st)}:{FB+4*(2*j+st)+3}], v[{a}:{a+15}]")
    e("s_add_u32 s31, s31, 1"); e("s_cmp_eq_u32 s31, 3")
    e("s_cselect_b32 s33, s34, s35"); e("s_cselect_b32 s31, 0, s31")
    for kk in range(4): e(f"v_add_u32 v{AR+kk}, s33, v{AR+kk}"); e(f"v_add_u32 v{BR+kk}, s33, v{BR+kk}")
    e(f"s_waitcnt vmcnt({NI})"); e("s_barrier")
    e("s_add_u32 s7, s7, 1"); e(f"s_cmp_lt_u32 s7, {NS}"); e(f"s_cbranch_scc1 {n}_loop")
    e("s_waitcnt vmcnt(0)")
    e("s_nop 15"); e("s_nop 3")
    epi(ACC, TM, TN)
    kend(n, ACC + 16*TM*TN)

def gelu(v, t):
    e(f"v_mul_f32 v{t}, v{v}, v{v}")
    e(f"v_fma_f32 v{t}, v{t}, s30, 1.0"); e(f"v_mul_f32 v{t}, v{t}, v{v}")
    e(f"v_mul_f32 v{t}, s31, v{t}")
    e(f"v_exp_f32 v{t}, v{t}"); e("s_nop 0")
    e(f"v_add_f32 v{t}, 1.0, v{t}")
    e(f"v_rcp_f32 v{t}, v{t}"); e("s_nop 0")
    e(f"v_mul_f32 v{v}, v{v}, v{t}")

def k_gemm1():
    def decode():
        e("s_mul_i32 s5, s2, 4682"); e("s_lshr_b32 s5, s5, 16")
        e("s_mul_i32 s4, s5, 14"); e("s_sub_u32 s4, s2, s4")
        e("s_lshl_b32 s4, s4, 7"); e("s_lshl_b32 s5, s5, 7")
    def epi(ACC, TM, TN):
        srd(16, 'ws', WS_Z, 2048*3584)
        e(f"s_mov_b32 s30, {hexf(0.044715)}"); e(f"s_mov_b32 s31, {hexf(-2*0.7978845608028654*1.4426950408889634)}")
        for j in range(TN):
            e(f"v_add_u32 v3, v17, v13"); e(f"v_add_u32 v3, {32*j}, v3"); e("v_add_u32 v3, s5, v3"); e("v_mul_u32_u24 v3, 3584, v3")
            e("v_lshlrev_b32 v20, 2, v14"); e("v_add_u32 v20, v20, v16"); e("v_add_u32 v20, s4, v20"); e("v_lshlrev_b32 v20, 1, v20")
            e("v_add_u32 v3, v3, v20")
            for i in range(TM):
                for rq in range(4):
                    a = ACC + 16*(i*TN+j) + 4*rq
                    for r in range(4): rnd(a+r, 21); gelu(a+r, 21)
                    e(f"v_cvt_pk_bf16_f32 v22, v{a}, v{a+1}"); e(f"v_cvt_pk_bf16_f32 v23, v{a+2}, v{a+3}")
                    e(f"buffer_store_dwordx2 v[22:23], v3, s[16:19], 0 offen offset:{2*(32*i+8*rq)}")
    gemm("gemm1_kernel", 224, ('ws', WS_WINT, 1792*896, 896), ('ws', WS_HN, SD, 896), 448, 128, 128, 2, 2, decode, epi)

def k_gemm2():
    def decode():
        e("s_and_b32 s5, s2, 31"); e("s_lshr_b32 s4, s2, 5")
        e("s_lshl_b32 s4, s4, 7"); e("s_lshl_b32 s5, s5, 6")
    def epi(ACC, TM, TN):
        srd(16, 'ws', WS_Z, 2048*3584); srd(20, 'ws', WS_U, 2048*1792); srd(28, 'bsp', 0, 4096)
        for j in range(TN):
            e(f"v_add_u32 v3, v17, v13"); e(f"v_add_u32 v3, {32*j}, v3"); e("v_add_u32 v3, s5, v3")
            e("v_lshlrev_b32 v21, 1, v3")
            e("buffer_load_ushort v24, v21, s[28:31], 0 offen")
            e("v_lshlrev_b32 v20, 2, v14"); e("v_add_u32 v20, v20, v16"); e("v_add_u32 v20, s4, v20"); e("v_lshlrev_b32 v20, 1, v20")
            e("v_mul_u32_u24 v21, 3584, v3"); e("v_add_u32 v21, v21, v20")
            e("v_mul_u32_u24 v3, 1792, v3"); e("v_add_u32 v3, v3, v20")
            e("s_waitcnt vmcnt(0)"); e("v_lshlrev_b32 v24, 16, v24")
            for i in range(TM):
                for rq in range(4):
                    a = ACC + 16*(i*TN+j) + 4*rq
                    e(f"buffer_load_dwordx2 v[26:27], v21, s[16:19], 0 offen offset:{2*(32*i+8*rq)}")
                    for r in range(4): rnd(a+r, 25); e(f"v_add_f32 v{a+r}, v{a+r}, v24"); rnd(a+r, 25)
                    e("s_waitcnt vmcnt(0)")
                    for r in range(4):
                        src = 26 + r//2
                        e(f"v_and_b32 v28, 0xffff0000, v{src}" if r & 1 else f"v_lshlrev_b32 v28, 16, v{src}")
                        e(f"v_mul_f32 v{a+r}, v{a+r}, v28")
                    e(f"v_cvt_pk_bf16_f32 v22, v{a}, v{a+1}"); e(f"v_cvt_pk_bf16_f32 v23, v{a+2}, v{a+3}")
                    e(f"buffer_store_dwordx2 v[22:23], v3, s[20:23], 0 offen offset:{2*(32*i+8*rq)}")
    gemm("gemm2_kernel", 224, ('ws', WS_Z2T, 896*4096, 4096), ('wsp', 0, 2048*4096, 4096), 2048, 128, 64, 2, 2, decode, epi)

def k_gemm3():
    def decode():
        e("s_and_b32 s5, s2, 31"); e("s_lshr_b32 s4, s2, 5")
        e("s_lshl_b32 s4, s4, 6"); e("s_lshl_b32 s5, s5, 6")
    def epi(ACC, TM, TN):
        srd(16, 'ws', WS_H, SD); srd(20, 'out', 0, SD)
        for j in range(TN):
            e(f"v_add_u32 v3, v17, v13"); e(f"v_add_u32 v3, {32*j}, v3"); e("v_add_u32 v3, s5, v3")
            e("v_lshlrev_b32 v20, 2, v14"); e("v_add_u32 v20, v20, v16"); e("v_add_u32 v20, s4, v20"); e("v_lshlrev_b32 v20, 1, v20")
            e("v_mul_u32_u24 v3, 896, v3"); e("v_add_u32 v3, v3, v20")
            for i in range(TM):
                for rq in range(4):
                    a = ACC + 16*(i*TN+j) + 4*rq
                    e(f"buffer_load_dwordx2 v[26:27], v3, s[16:19], 0 offen offset:{2*(32*i+8*rq)}")
                    for r in range(4): rnd(a+r, 25)
                    e("s_waitcnt vmcnt(0)")
                    for r in range(4):
                        src = 26 + r//2
                        e(f"v_and_b32 v28, 0xffff0000, v{src}" if r & 1 else f"v_lshlrev_b32 v28, 16, v{src}")
                        e(f"v_add_f32 v{a+r}, v{a+r}, v28")
                    e(f"v_cvt_pk_bf16_f32 v22, v{a}, v{a+1}"); e(f"v_cvt_pk_bf16_f32 v23, v{a+2}, v{a+3}")
                    e(f"buffer_store_dwordx2 v[22:23], v3, s[20:23], 0 offen offset:{2*(32*i+8*rq)}")
    gemm("gemm3_kernel", 224, ('ws', WS_WOUTT, 448*1792, 1792), ('ws', WS_U, 2048*1792, 1792), 896, 64, 64, 2, 2, decode, epi)

k_prep(); k_conv(); k_hln(); k_gemm1(); k_ln2(); k_gemm2(); k_gemm3()
hdr = open(OUT + ".ref").read().split("; Override launch")[0]
txt = hdr + "\n".join(launches) + '\n.amdgcn_target "amdgcn-amd-amdhsa--gfx950"\n.text\n' + "\n".join(L) + '\n.p2align 8\n.section .rodata,"a"\n' + "\n".join(descs) + "\n"
open(OUT, "w").write(txt)
print("wrote", len(txt), "bytes")
```

```python
import sys
OUT = "sequential_preLN__ssm_conv_h3__mixer_gmlp__prompt.s"
MB = 1 << 20
WS_KVT, WS_YT, WS_H, WS_HN, WS_WINT, WS_WOUTT = 0, 2*MB, 4*MB, 6*MB, 8*MB, 10*MB
WS_Z, WS_Z2T, WS_U = 12*MB, 20*MB, 24*MB
SD = 2048*448*2
ARG = dict(q=0, k=8, v=16, shk=24, ssmk=32, ssmD=40, x=48, win=56, wsp=64, bsp=72, wout=80, out=88, dbg=96, ws=104)

L = []
def e(s): L.append("    " + s)
def lab(s): L.append(s + ":")
launches = []
descs = []

def kstart(name, grid, lds, nwg_guard, blk=256):
    launches.append(f"; @launch kernel={name} grid=({grid},1,1) block=({blk},1,1) lds={lds}")
    L.append(f".globl {name}\n.p2align 8\n.type {name},@function\n{name}:")
    e(f"s_cmp_ge_u32 s2, {nwg_guard}")
    e(f"s_cbranch_scc1 {name}_end")
    e("s_load_dwordx16 s[64:79], s[0:1], 0"); e("s_load_dwordx8 s[80:87], s[0:1], 64"); e("s_load_dwordx4 s[88:91], s[0:1], 96")
    e("s_waitcnt lgkmcnt(0)")

def kend(name, vgpr):
    lab(f"{name}_end")
    e("s_endpgm")
    v = (vgpr + 3)//4*4
    descs.append(f""".p2align 6
.amdhsa_kernel {name}
  .amdhsa_next_free_vgpr {v}
  .amdhsa_next_free_sgpr 102
  .amdhsa_accum_offset {v}
  .amdhsa_group_segment_fixed_size 0
  .amdhsa_kernarg_size 112
  .amdhsa_user_sgpr_count 2
  .amdhsa_user_sgpr_kernarg_segment_ptr 1
  .amdhsa_system_sgpr_workgroup_id_x 1
.end_amdhsa_kernel""")

def srd(s, arg, off, size):
    b = 64 + ARG[arg]//4
    e(f"s_add_u32 s{s}, s{b}, {off}")
    e(f"s_addc_u32 s{s+1}, s{b+1}, 0")
    e(f"s_mov_b32 s{s+2}, {size}")
    e(f"s_mov_b32 s{s+3}, 0x00020000")

def rnd(v, t):
    e(f"v_cvt_pk_bf16_f32 v{t}, v{v}, v{v}")
    e(f"v_lshlrev_b32 v{v}, 16, v{t}")

def wave_sum(v, t):
    for off in (0x041F, 0x081F, 0x101F, 0x201F, 0x401F):
        e(f"ds_swizzle_b32 v{t}, v{v} offset:{off:#x}")
        e("s_waitcnt lgkmcnt(0)")
        e(f"v_add_f32 v{v}, v{v}, v{t}")
    e("s_nop 1")
    e(f"v_readlane_b32 s98, v{v}, 0")
    e(f"v_readlane_b32 s99, v{v}, 32")
    e("s_nop 3")
    e(f"v_mov_b32 v{v}, s98")
    e(f"v_add_f32 v{v}, s99, v{v}")

def k_prep():
    n = "prep_kernel"
    kstart(n, 518, 0, 518)
    e("v_and_b32 v1, 63, v0")
    e("v_lshrrev_b32 v2, 6, v0")
    e(f"s_cmp_ge_u32 s2, 224")
    e(f"s_cbranch_scc1 prep_tr")
    srd(8, 'k', 0, SD); srd(12, 'v', 0, SD); srd(16, 'shk', 0, 448*8); srd(20, 'ws', WS_KVT, SD)
    e("s_and_b32 s4, s2, 31")
    e("s_lshr_b32 s5, s2, 5")
    e("s_lshl_b32 s4, s4, 6")
    e("s_lshl_b32 s5, s5, 6")
    e("v_add_u32 v3, s5, v1")
    e("v_lshlrev_b32 v4, 4, v2")
    e("v_add_u32 v4, s4, v4")
    e("v_lshlrev_b32 v5, 3, v3")
    e("buffer_load_dwordx2 v[6:7], v5, s[16:19], 0 offen")
    e("v_lshlrev_b32 v8, 1, v3")
    for i in range(19):
        e(f"v_add_u32 v9, {i-3}, v4" if i >= 3 else f"v_subrev_u32 v9, {3-i}, v4")
        e("v_max_i32 v10, 0, v9")
        e("v_mul_u32_u24 v10, 896, v10")
        e("v_add_u32 v10, v10, v8")
        e(f"buffer_load_ushort v{20+i}, v10, s[8:11], 0 offen")
        if i >= 3:
            e(f"buffer_load_ushort v{40+i-3}, v10, s[12:15], 0 offen")
    e("s_waitcnt vmcnt(0)")
    for i in range(3):
        e(f"v_subrev_u32 v9, {3-i}, v4")
        e("v_cmp_le_i32 vcc, 0, v9")
        e("s_nop 1")
        e(f"v_cndmask_b32 v{20+i}, 0, v{20+i}, vcc")
    for i in range(19): e(f"v_lshlrev_b32 v{20+i}, 16, v{20+i}")
    for i in range(16): e(f"v_lshlrev_b32 v{40+i}, 16, v{40+i}")
    e("v_lshlrev_b32 v11, 16, v6")
    e("v_and_b32 v12, 0xffff0000, v6")
    e("v_lshlrev_b32 v13, 16, v7")
    e("v_and_b32 v14, 0xffff0000, v7")
    for i in range(16):
        e(f"v_mul_f32 v15, v{20+i}, v14"); rnd(15, 9)
        e(f"v_mul_f32 v16, v{21+i}, v13"); rnd(16, 9)
        e("v_add_f32 v15, v15, v16"); rnd(15, 9)
        e(f"v_mul_f32 v16, v{22+i}, v12"); rnd(16, 9)
        e("v_add_f32 v15, v15, v16"); rnd(15, 9)
        e(f"v_mul_f32 v16, v{23+i}, v11"); rnd(16, 9)
        e("v_add_f32 v15, v15, v16"); rnd(15, 9)
        e(f"v_mul_f32 v{60+i}, v15, v{40+i}")
    for i in range(8): e(f"v_cvt_pk_bf16_f32 v{80+i}, v{60+2*i}, v{61+2*i}")
    e("v_lshlrev_b32 v9, 12, v3")
    e("v_lshlrev_b32 v10, 1, v4")
    e("v_add_u32 v9, v9, v10")
    e("buffer_store_dwordx4 v[80:83], v9, s[20:23], 0 offen")
    e("buffer_store_dwordx4 v[84:87], v9, s[20:23], 0 offen offset:16")
    e(f"s_branch {n}_end")
    lab("prep_tr")
    e("s_cmp_ge_u32 s2, 420")
    e("s_cbranch_scc1 prep_tr2")
    srd(8, 'win', 0, 448*1792*2); srd(20, 'ws', WS_WINT, 448*1792*2)
    e("s_sub_u32 s4, s2, 224")
    e("s_mul_i32 s5, s4, 9363"); e("s_lshr_b32 s5, s5, 16")
    e("s_mul_i32 s6, s5, 7"); e("s_sub_u32 s6, s4, s6")
    e("s_mov_b32 s24, 3584"); e("s_mov_b32 s25, 896")
    e("s_branch prep_trc")
    lab("prep_tr2")
    srd(8, 'wout', 0, 896*448*2); srd(20, 'ws', WS_WOUTT, 896*448*2)
    e("s_sub_u32 s4, s2, 420")
    e("s_mul_i32 s5, s4, 4682"); e("s_lshr_b32 s5, s5, 16")
    e("s_mul_i32 s6, s5, 14"); e("s_sub_u32 s6, s4, s6")
    e("s_mov_b32 s24, 896"); e("s_mov_b32 s25, 1792")
    lab("prep_trc")
    e("s_lshl_b32 s5, s5, 6"); e("s_lshl_b32 s6, s6, 6")
    e("v_add_u32 v3, s5, v1")
    e("v_lshlrev_b32 v4, 4, v2"); e("v_add_u32 v4, s6, v4")
    e("v_mul_lo_u32 v5, v4, s24")
    e("v_lshlrev_b32 v6, 1, v3"); e("v_add_u32 v5, v5, v6")
    for i in range(16):
        e(f"buffer_load_ushort v{20+i}, v5, s[8:11], 0 offen")
        e("v_add_u32 v5, s24, v5")
    e("s_waitcnt vmcnt(0)")
    for i in range(8):
        e(f"v_lshl_or_b32 v{40+i}, v{21+2*i}, 16, v{20+2*i}")
    e("v_mul_lo_u32 v5, v3, s25")
    e("v_lshlrev_b32 v6, 1, v4"); e("v_add_u32 v5, v5, v6")
    e("buffer_store_dwordx4 v[40:43], v5, s[20:23], 0 offen")
    e("buffer_store_dwordx4 v[44:47], v5, s[20:23], 0 offen offset:16")
    kend(n, 96)

XR, KC, KCS, YACC = 0, 10240, 4160, 10240+33280
def k_conv():
    n = "conv_kernel"
    kstart(n, 448, YACC+8192, 448)
    srd(8, 'ws', WS_KVT, SD); srd(12, 'ssmk', 0, 448*4096); srd(16, 'ssmD', 0, 896); srd(20, 'ws', WS_YT, SD)
    e("s_lshl_b32 s4, s2, 12")
    e("v_lshlrev_b32 v1, 4, v0")
    e("buffer_load_dwordx4 v[4:7], v1, s[8:11], s4 offen")
    e("buffer_load_dwordx4 v[48:51], v1, s[12:15], s4 offen")
    e("buffer_load_dwordx4 v[52:55], v1, s[12:15], s4 offen offset:16")
    e("s_lshl_b32 s5, s2, 1")
    e("v_mov_b32 v2, s5")
    e("buffer_load_ushort v3, v2, s[16:19], 0 offen")
    e("v_mov_b32 v12, 0"); e("v_mov_b32 v13, 0"); e("v_mov_b32 v14, 0"); e("v_mov_b32 v15, 0")
    e(f"ds_write_b128 v1, v[12:15] offset:{XR}")
    e(f"ds_write_b128 v1, v[12:15] offset:{YACC}")
    e(f"ds_write_b128 v1, v[12:15] offset:{YACC+4096}")
    e("v_cmp_gt_u32 vcc, 64, v0")
    e("s_and_saveexec_b64 s[24:25], vcc")
    e(f"ds_write_b128 v1, v[12:15] offset:{XR+4096}")
    e("v_lshrrev_b32 v16, 2, v0"); e(f"v_mul_u32_u24 v16, {KCS}, v16")
    e("v_and_b32 v17, 3, v0"); e("v_lshlrev_b32 v17, 4, v17"); e("v_add_u32 v16, v16, v17")
    e("v_cmp_gt_u32 vcc, 32, v0")
    e("s_and_b64 exec, exec, vcc")
    e(f"ds_write_b128 v16, v[12:15] offset:{KC}")
    e("s_mov_b64 exec, s[24:25]")
    e("s_waitcnt vmcnt(0) lgkmcnt(0)")
    e("s_barrier")
    e("v_alignbit_b32 v12, v7, v7, 16"); e("v_alignbit_b32 v13, v6, v6, 16")
    e("v_alignbit_b32 v14, v5, v5, 16"); e("v_alignbit_b32 v15, v4, v4, 16")
    e("v_lshrrev_b32 v16, 2, v0"); e("v_add_u32 v16, 64, v16"); e("v_mul_u32_u24 v16, 80, v16")
    e("v_and_b32 v17, 3, v0"); e("v_lshlrev_b32 v17, 4, v17"); e("v_sub_u32 v17, 48, v17")
    e("v_add_u32 v16, v16, v17")
    e(f"ds_write_b128 v16, v[12:15] offset:{XR}")
    e("v_lshlrev_b32 v16, 4, v0")
    for j in range(8):
        if j & 1:
            for c in range(4): e(f"v_alignbit_b32 v{56+c}, v{48+j//2+c+1}, v{48+j//2+c}, 16")
            e(f"ds_write_b128 v16, v[56:59] offset:{KC + j*KCS + 64}")
        elif (j//2) % 2 == 0:
            e(f"ds_write_b128 v16, v[{48+j//2}:{51+j//2}] offset:{KC + j*KCS + 64}")
        else:
            for c in range(4): e(f"v_mov_b32 v{60+c}, v{48+j//2+c}")
            e(f"ds_write_b128 v16, v[60:63] offset:{KC + j*KCS + 64}")
    e("v_cmp_eq_u32 vcc, 0, v0"); e("s_and_saveexec_b64 s[24:25], vcc")
    for i in range(7):
        if i & 1: e(f"v_lshrrev_b32 v17, 16, v{48+i//2}")
        for j in range(i+1, 8):
            e(f"ds_write_b16 v16, v{17 if i & 1 else 48+i//2} offset:{KC + j*KCS + 2*(32-j+i)}")
    e("s_mov_b64 exec, s[24:25]")
    e("s_waitcnt lgkmcnt(0)")
    e("s_barrier")
    e("v_and_b32 v16, 31, v0")
    e("v_bfe_u32 v17, v0, 5, 1")
    e("v_lshrrev_b32 v18, 6, v0")
    e("v_add_u32 v19, 36, v16"); e("v_sub_u32 v19, v19, v18"); e("v_mul_u32_u24 v19, 80, v19")
    e("v_lshlrev_b32 v20, 4, v17"); e("v_add_u32 v19, v19, v20")
    e("v_add_u32 v21, 1, v16"); e("v_and_b32 v22, 7, v21"); e(f"v_mul_u32_u24 v22, {KCS}, v22")
    e("v_lshrrev_b32 v21, 3, v21"); e("v_add_u32 v21, v21, v17"); e("v_lshlrev_b32 v21, 4, v21")
    e("v_add_u32 v22, v22, v21"); e("v_lshlrev_b32 v21, 6, v18"); e("v_add_u32 v22, v22, v21")
    for i in range(32): e(f"v_mov_b32 v{80+i}, 0")
    def crd(it):
        ao = 320*(15-it); b = 24*(it & 1) + 24
        for kk in range(2):
            e(f"ds_read_b128 v[{b+4*kk}:{b+3+4*kk}], v22 offset:{KC + 256*it + 32*kk}")
            e(f"ds_read_b128 v[{b+8+4*kk}:{b+11+4*kk}], v19 offset:{XR + ao + 32*kk}")
        if it < 8:
            for kk in range(2): e(f"ds_read_b128 v[{b+16+4*kk}:{b+19+4*kk}], v19 offset:{XR + ao - 2560 + 32*kk}")
        return 6 if it < 8 else 4
    crd(0)
    for it in range(16):
        b = 24*(it & 1) + 24
        if it < 15: e(f"s_waitcnt lgkmcnt({crd(it+1)})")
        else: e("s_waitcnt lgkmcnt(0)")
        for kk in range(2):
            e(f"v_mfma_f32_32x32x16_bf16 v[96:111], v[{b+8+4*kk}:{b+11+4*kk}], v[{b+4*kk}:{b+3+4*kk}], v[96:111]")
            if it < 8:
                e(f"v_mfma_f32_32x32x16_bf16 v[80:95], v[{b+16+4*kk}:{b+19+4*kk}], v[{b+4*kk}:{b+3+4*kk}], v[80:95]")
    e("s_nop 15"); e("s_nop 3")
    e("s_barrier")
    e("v_lshlrev_b32 v20, 7, v17"); e("v_add_u32 v20, v20, v16"); e("v_lshlrev_b32 v20, 2, v20")
    e("v_lshlrev_b32 v21, 13, v18"); e("v_add_u32 v20, v20, v21")
    for tile in range(2):
        for i in range(16):
            a = 32*tile + 8*(i >> 2) + (i & 3)
            e(f"ds_write_b32 v20, v{(80 if tile == 0 else 96)+i} offset:{KC + 128*a}")
    e("s_waitcnt lgkmcnt(0)")
    e("s_barrier")
    e("v_lshlrev_b32 v20, 5, v0")
    for w in range(4):
        e(f"ds_read_b128 v[{24+8*w}:{27+8*w}], v20 offset:{KC+8192*w}")
        e(f"ds_read_b128 v[{28+8*w}:{31+8*w}], v20 offset:{KC+8192*w+16}")
    e("s_waitcnt lgkmcnt(0)")
    for w in range(1, 4):
        for i in range(8): e(f"v_add_f32 v{24+i}, v{24+i}, v{24+8*w+i}")
    e("v_lshlrev_b32 v3, 16, v3")
    e("s_waitcnt lgkmcnt(0)")
    for i in range(8):
        kvsrc = 4 + i//2
        if i & 1: e(f"v_and_b32 v33, 0xffff0000, v{kvsrc}")
        else: e(f"v_lshlrev_b32 v33, 16, v{kvsrc}")
        e("v_mul_f32 v33, v33, v3"); rnd(33, 34)
        rnd(24+i, 34)
        e(f"v_add_f32 v{24+i}, v{24+i}, v33")
    for i in range(4): e(f"v_cvt_pk_bf16_f32 v{36+i}, v{24+2*i}, v{25+2*i}")
    e("buffer_store_dwordx4 v[36:39], v1, s[20:23], s4 offen")
    kend(n, 112)

def ln_rows(xs, n, t0, outf):
    s, m, d, t = t0, t0+1, t0+2, t0+3
    e(f"v_mov_b32 v{s}, v{xs[0]}")
    for x in xs[1:]: e(f"v_add_f32 v{s}, v{s}, v{x}")
    wave_sum(s, t)
    e(f"v_mul_f32 v{m}, {hexf(1.0/n)}, v{s}")
    e(f"v_mov_b32 v{s}, 0")
    for x in xs:
        e(f"v_sub_f32 v{d}, v{x}, v{m}")
        e(f"v_fmac_f32 v{s}, v{d}, v{d}")
    wave_sum(s, t)
    e(f"v_mul_f32 v{s}, {hexf(1.0/n)}, v{s}"); rnd(s, t)
    rnd(m, t)
    e(f"v_add_f32 v{s}, {hexf(1e-5)}, v{s}"); rnd(s, t)
    e(f"v_sqrt_f32 v{s}, v{s}"); e("s_nop 0"); rnd(s, t)
    e(f"v_rcp_f32 v{d}, v{s}"); e("s_nop 0")
    e(f"v_fma_f32 v{t}, -v{s}, v{d}, 1.0"); e(f"v_fmac_f32 v{d}, v{t}, v{d}")
    for x in xs:
        e(f"v_sub_f32 v{x}, v{x}, v{m}"); rnd(x, t)
        e(f"v_mul_f32 v{x}, v{x}, v{d}"); rnd(x, t)

import struct
def hexf(f): return "0x%08x" % struct.unpack("<I", struct.pack("<f", f))[0]

def k_hln():
    n = "hln_kernel"
    YL = 912
    kstart(n, 128, 16*YL, 128, 1024)
    srd(8, 'ws', WS_YT, SD); srd(12, 'q', 0, SD); srd(16, 'ws', WS_H, SD); srd(20, 'ws', WS_HN, SD)
    e("s_lshl_b32 s4, s2, 5")
    e("v_lshrrev_b32 v3, 1, v0"); e("v_and_b32 v2, 1, v0")
    e("v_lshlrev_b32 v4, 12, v3"); e("v_lshlrev_b32 v5, 4, v2"); e("v_add_u32 v4, v4, v5")
    e("v_cmp_gt_u32 vcc, 448, v3"); e("s_and_saveexec_b64 s[24:25], vcc")
    e("s_cbranch_execz hln_skip")
    e("buffer_load_dwordx4 v[8:11], v4, s[8:11], s4 offen")
    e("v_lshlrev_b32 v4, 1, v3"); e(f"v_mul_u32_u24 v5, {8*YL}, v2"); e("v_add_u32 v4, v4, v5")
    e("s_waitcnt vmcnt(0)")
    for i in range(8):
        if i & 1: e(f"v_lshrrev_b32 v12, 16, v{8+i//2}")
        e(f"ds_write_b16 v4, v{12 if i & 1 else 8+i//2} offset:{i*YL}")
    lab("hln_skip")
    e("s_mov_b64 exec, s[24:25]")
    e("v_and_b32 v1, 63, v0"); e("v_lshrrev_b32 v3, 6, v0")
    e("s_lshl_b32 s5, s2, 4")
    e("v_add_u32 v4, s5, v3"); e("v_mul_u32_u24 v4, 896, v4"); e("v_lshlrev_b32 v5, 1, v1"); e("v_add_u32 v4, v4, v5")
    e(f"v_mul_u32_u24 v6, {YL}, v3"); e("v_add_u32 v6, v6, v5")
    for i in range(7): e(f"buffer_load_ushort v{10+i}, v4, s[12:15], 0 offen offset:{128*i}")
    e("s_waitcnt lgkmcnt(0)"); e("s_barrier")
    for i in range(7): e(f"ds_read_u16 v{20+i}, v6 offset:{128*i}")
    e("s_waitcnt vmcnt(0) lgkmcnt(0)")
    for i in range(7):
        e(f"v_lshlrev_b32 v{10+i}, 16, v{10+i}"); e(f"v_lshlrev_b32 v{20+i}, 16, v{20+i}")
        e(f"v_mov_b32 v{30+i}, v{10+i}")
    ln_rows([30+i for i in range(7)], 448, 40, None)
    for i in range(7):
        e(f"v_mul_f32 v{30+i}, v{30+i}, v{20+i}"); rnd(30+i, 44)
        e(f"v_add_f32 v{30+i}, v{30+i}, v{10+i}"); rnd(30+i, 44)
        e(f"v_lshrrev_b32 v45, 16, v{30+i}")
        e(f"buffer_store_short v45, v4, s[16:19], 0 offen offset:{128*i}")
    ln_rows([30+i for i in range(7)], 448, 40, None)
    for i in range(7):
        e(f"v_lshrrev_b32 v45, 16, v{30+i}")
        e(f"buffer_store_short v45, v4, s[20:23], 0 offen offset:{128*i}")
    kend(n, 48)

def k_ln2():
    n = "ln2_kernel"
    TL = 48
    kstart(n, 128, 896*TL, 128, 1024)
    srd(8, 'ws', WS_Z, 2048*3584); srd(12, 'ws', WS_Z2T, 896*4096)
    e("v_and_b32 v1, 63, v0"); e("v_lshrrev_b32 v3, 6, v0")
    e("s_lshl_b32 s5, s2, 4")
    e("v_add_u32 v4, s5, v3"); e("v_mul_u32_u24 v4, 3584, v4"); e("v_lshlrev_b32 v5, 1, v1"); e("v_add_u32 v4, v4, v5")
    for i in range(14):
        e(f"buffer_load_ushort v{10+i}, v4, s[8:11], 0 offen offset:{1792+128*i}")
    e("s_waitcnt vmcnt(0)")
    for i in range(14): e(f"v_lshlrev_b32 v{10+i}, 16, v{10+i}")
    ln_rows([10+i for i in range(14)], 896, 40, None)
    e(f"v_mul_u32_u24 v6, {TL}, v1"); e("v_lshlrev_b32 v5, 1, v3"); e("v_add_u32 v6, v6, v5")
    for i in range(14):
        e(f"v_lshrrev_b32 v45, 16, v{10+i}")
        e(f"ds_write_b16 v6, v45 offset:{64*TL*i}")
    e("s_waitcnt lgkmcnt(0)"); e("s_barrier")
    e("s_lshl_b32 s4, s2, 5")
    e("v_lshrrev_b32 v1, 1, v0"); e("v_and_b32 v2, 1, v0")
    for p in range(2):
        e(f"v_add_u32 v3, {512*p}, v1")
        if p == 1:
            e("v_cmp_gt_u32 vcc, 896, v3"); e("s_and_saveexec_b64 s[24:25], vcc"); e("s_cbranch_execz ln2_kernel_end")
        e(f"v_mul_u32_u24 v4, {TL}, v3"); e("v_lshlrev_b32 v5, 4, v2"); e("v_add_u32 v4, v4, v5")
        e("ds_read_b128 v[8:11], v4")
        e("v_lshlrev_b32 v4, 12, v3"); e("v_add_u32 v4, v4, v5")
        e("s_waitcnt lgkmcnt(0)")
        e("buffer_store_dwordx4 v[8:11], v4, s[12:15], s4 offen")
    kend(n, 48)

def gemm(n, nwg, A, B, K, BM, BN, WM, WN, decode, epi, NB=3, pre=None):
    TM, TN = BM//WM//32, BN//WN//32
    ABUF, BBUF = BM*128, BN*128
    STG = ABUF + BBUF
    NI = (BM+BN)//32
    NIA = BM//32
    kstart(n, nwg, NB*STG, nwg)
    srd(8, A[0], A[1], A[2]); srd(12, B[0], B[1], B[2])
    decode()
    e(f"s_mov_b32 s26, {A[3]}"); e(f"s_mov_b32 s27, {B[3]}")
    e("v_lshrrev_b32 v15, 6, v0")
    e("v_and_b32 v1, 63, v0"); e("v_lshrrev_b32 v2, 3, v1"); e("v_and_b32 v3, 7, v1")
    e("s_nop 0"); e("v_readfirstlane_b32 s28, v15"); e("s_nop 3"); e("s_lshl_b32 s28, s28, 10")
    for i in range(NI):
        isA = i < NIA
        q = i if isA else i - NIA
        e("v_lshlrev_b32 v20, 3, v15"); e(f"v_add_u32 v20, {32*q}, v20"); e("v_add_u32 v20, v20, v2")
        e("v_bfe_u32 v21, v20, 1, 3"); e("v_xor_b32 v21, v21, v3"); e("v_lshlrev_b32 v21, 4, v21")
        e(f"v_add_u32 v20, s{4 if isA else 5}, v20"); e(f"v_mul_lo_u32 v20, v20, s{26 if isA else 27}")
        e(f"v_add_u32 v{24+i}, v20, v21")
    e("v_and_b32 v13, 31, v0"); e("v_bfe_u32 v14, v0, 5, 1")
    e(f"v_and_b32 v16, {WM-1}, v15"); e(f"v_lshrrev_b32 v17, {WM.bit_length()-1}, v15")
    e(f"v_mul_u32_u24 v16, {32*TM}, v16"); e(f"v_mul_u32_u24 v17, {32*TN}, v17")
    AR, BR = 40, 44
    for (reg, woff, base) in ((AR, 16, 0), (BR, 17, ABUF)):
        e(f"v_add_u32 v20, v{woff}, v13")
        e("v_bfe_u32 v21, v20, 1, 3")
        e("v_and_b32 v22, 1, v21"); e("v_xor_b32 v22, v22, v14"); e("v_lshlrev_b32 v22, 4, v22")
        e("v_lshlrev_b32 v20, 7, v20"); e("v_add_u32 v20, v20, v22"); e(f"v_add_u32 v20, {base}, v20")
        e("v_lshrrev_b32 v21, 1, v21")
        for kk in range(4):
            e(f"v_xor_b32 v22, {kk}, v21"); e("v_lshlrev_b32 v22, 5, v22"); e(f"v_add_u32 v{reg+kk}, v20, v22")
    FA = 48; FB = FA + 8*TM
    ACC = 96
    assert FB + 8*TN <= ACC
    for i in range(16*TM*TN): e(f"v_mov_b32 v{ACC+i}, 0")
    NS = K//64
    def dma():
        for i in range(NI):
            e(f"s_add_u32 m0, s29, {4096*i}")
            e("s_nop 0")
            e(f"buffer_load_dwordx4 v{24+i}, s[{8 if i < NIA else 12}:{11 if i < NIA else 15}], s6 offen lds")
        e("s_add_u32 s6, s6, 128")
        e(f"s_cmp_ge_u32 s6, {2*K}"); e("s_cselect_b32 s6, 0, s6")
        e(f"s_add_u32 s29, s29, {STG}")
        e(f"s_cmp_ge_u32 s29, s30")
        e(f"s_cselect_b32 s29, s28, s29")
    def rd(kk, st):
        for i in range(TM): e(f"ds_read_b128 v[{FA+4*(2*i+st)}:{FA+4*(2*i+st)+3}], v{AR+kk} offset:{4096*i}")
        for j in range(TN): e(f"ds_read_b128 v[{FB+4*(2*j+st)}:{FB+4*(2*j+st)+3}], v{BR+kk} offset:{4096*j}")
    e("s_mul_i32 s6, s2, 5"); e("s_lshr_b32 s33, s2, 3"); e("s_add_u32 s6, s6, s33")
    e(f"s_mul_hi_u32 s33, s6, {(1<<32)//NS + 1}"); e(f"s_mul_i32 s33, s33, {NS}"); e("s_sub_u32 s6, s6, s33"); e("s_lshl_b32 s6, s6, 7")
    e("s_mov_b32 s29, s28"); e(f"s_add_u32 s30, s28, {NB*STG}")
    e("s_mov_b32 s31, 0")
    e(f"s_mov_b32 s34, {-(NB-1)*STG & 0xffffffff}"); e(f"s_mov_b32 s35, {STG}")
    if pre: pre(ACC, TM, TN)
    for _ in range(NB-1): dma()
    e(f"s_waitcnt vmcnt({(NB-2)*NI})"); e("s_barrier")
    e("s_mov_b32 s7, 0")
    lab(f"{n}_loop")
    rd(0, 0)
    pend = list(range(NI))
    def one_dma():
        if not pend: return
        i = pend.pop(0)
        e(f"s_add_u32 m0, s29, {4096*i}")
        e("s_nop 0")
        e(f"buffer_load_dwordx4 v{24+i}, s[{8 if i < NIA else 12}:{11 if i < NIA else 15}], s6 offen lds")
    per = (NI + 3)//4
    for kk in range(4):
        st = kk & 1
        if kk < 3: rd(kk+1, st ^ 1); e(f"s_waitcnt lgkmcnt({TM+TN})")
        else: e("s_waitcnt lgkmcnt(0)")
        cnt = 0
        for i in range(TM):
            for j in range(TN):
                a = ACC + 16*(i*TN+j)
                e(f"v_mfma_f32_32x32x16_bf16 v[{a}:{a+15}], v[{FA+4*(2*i+st)}:{FA+4*(2*i+st)+3}], v[{FB+4*(2*j+st)}:{FB+4*(2*j+st)+3}], v[{a}:{a+15}]")
                if cnt < per: one_dma(); cnt += 1
        while cnt < per: one_dma(); cnt += 1
    assert not pend
    e("s_add_u32 s6, s6, 128")
    e(f"s_cmp_ge_u32 s6, {2*K}"); e("s_cselect_b32 s6, 0, s6")
    e(f"s_add_u32 s29, s29, {STG}")
    e(f"s_cmp_ge_u32 s29, s30")
    e(f"s_cselect_b32 s29, s28, s29")
    e("s_add_u32 s31, s31, 1"); e(f"s_cmp_eq_u32 s31, {NB}")
    e("s_cselect_b32 s33, s34, s35"); e("s_cselect_b32 s31, 0, s31")
    for kk in range(4): e(f"v_add_u32 v{AR+kk}, s33, v{AR+kk}"); e(f"v_add_u32 v{BR+kk}, s33, v{BR+kk}")
    e(f"s_waitcnt vmcnt({(NB-2)*NI})"); e("s_barrier")
    e("s_add_u32 s7, s7, 1"); e(f"s_cmp_lt_u32 s7, {NS}"); e(f"s_cbranch_scc1 {n}_loop")
    e("s_waitcnt vmcnt(0)")
    e("s_nop 15"); e("s_nop 3")
    epi(ACC, TM, TN)
    kend(n, ACC + 16*TM*TN + (40 if pre else 0))

def gelu(v, t):
    e(f"v_mul_f32 v{t}, v{v}, v{v}")
    e(f"v_fma_f32 v{t}, v{t}, s30, 1.0"); e(f"v_mul_f32 v{t}, v{t}, v{v}")
    e(f"v_mul_f32 v{t}, s31, v{t}")
    e(f"v_exp_f32 v{t}, v{t}"); e("s_nop 0")
    e(f"v_add_f32 v{t}, 1.0, v{t}")
    e(f"v_rcp_f32 v{t}, v{t}"); e("s_nop 0")
    e(f"v_mul_f32 v{v}, v{v}, v{t}")

def k_gemm1():
    def decode():
        e("s_mul_i32 s5, s2, 4682"); e("s_lshr_b32 s5, s5, 16")
        e("s_mul_i32 s4, s5, 14"); e("s_sub_u32 s4, s2, s4")
        e("s_lshl_b32 s4, s4, 7"); e("s_lshl_b32 s5, s5, 7")
    def epi(ACC, TM, TN):
        srd(16, 'ws', WS_Z, 2048*3584)
        e(f"s_mov_b32 s30, {hexf(0.044715)}"); e(f"s_mov_b32 s31, {hexf(-2*0.7978845608028654*1.4426950408889634)}")
        for j in range(TN):
            e(f"v_add_u32 v3, v17, v13"); e(f"v_add_u32 v3, {32*j}, v3"); e("v_add_u32 v3, s5, v3"); e("v_mul_u32_u24 v3, 3584, v3")
            e("v_lshlrev_b32 v20, 2, v14"); e("v_add_u32 v20, v20, v16"); e("v_add_u32 v20, s4, v20"); e("v_lshlrev_b32 v20, 1, v20")
            e("v_add_u32 v3, v3, v20")
            for i in range(TM):
                for rq in range(4):
                    a = ACC + 16*(i*TN+j) + 4*rq
                    for r in range(4): rnd(a+r, 21); gelu(a+r, 21)
                    e(f"v_cvt_pk_bf16_f32 v22, v{a}, v{a+1}"); e(f"v_cvt_pk_bf16_f32 v23, v{a+2}, v{a+3}")
                    e(f"buffer_store_dwordx2 v[22:23], v3, s[16:19], 0 offen offset:{2*(32*i+8*rq)}")
    gemm("gemm1_kernel", 224, ('ws', WS_WINT, 1792*896, 896), ('ws', WS_HN, SD, 896), 448, 128, 128, 2, 2, decode, epi, 4)

def k_gemm2():
    def decode():
        e("s_and_b32 s5, s2, 31"); e("s_lshr_b32 s4, s2, 5")
        e("s_lshl_b32 s4, s4, 7"); e("s_lshl_b32 s5, s5, 6")
    def pre(ACC, TM, TN):
        P = ACC + 16*TM*TN
        srd(16, 'ws', WS_Z, 2048*3584); srd(20, 'ws', WS_U, 2048*1792); srd(36, 'bsp', 0, 4096)
        e(f"v_add_u32 v3, v17, v13"); e("v_add_u32 v3, s5, v3")
        e("v_lshlrev_b32 v21, 1, v3")
        e(f"buffer_load_ushort v{P+32}, v21, s[36:39], 0 offen")
        e("v_lshlrev_b32 v20, 2, v14"); e("v_add_u32 v20, v20, v16"); e("v_add_u32 v20, s4, v20"); e("v_lshlrev_b32 v20, 1, v20")
        e("v_mul_u32_u24 v21, 3584, v3"); e("v_add_u32 v21, v21, v20")
        e("v_mul_u32_u24 v3, 1792, v3"); e(f"v_add_u32 v{P+33}, v3, v20")
        for i in range(TM):
            for rq in range(4):
                e(f"buffer_load_dwordx2 v[{P+2*(4*i+rq)}:{P+2*(4*i+rq)+1}], v21, s[16:19], 0 offen offset:{2*(32*i+8*rq)}")
    def epi(ACC, TM, TN):
        P = ACC + 16*TM*TN
        e(f"v_lshlrev_b32 v24, 16, v{P+32}")
        for i in range(TM):
            for rq in range(4):
                a = ACC + 16*i + 4*rq
                for r in range(4): rnd(a+r, 25); e(f"v_add_f32 v{a+r}, v{a+r}, v24"); rnd(a+r, 25)
                for r in range(4):
                    src = P + 2*(4*i+rq) + r//2
                    e(f"v_and_b32 v28, 0xffff0000, v{src}" if r & 1 else f"v_lshlrev_b32 v28, 16, v{src}")
                    e(f"v_mul_f32 v{a+r}, v{a+r}, v28")
                e(f"v_cvt_pk_bf16_f32 v{a}, v{a}, v{a+1}"); e(f"v_cvt_pk_bf16_f32 v{a+1}, v{a+2}, v{a+3}")
                e(f"buffer_store_dwordx2 v[{a}:{a+1}], v{P+33}, s[20:23], 0 offen offset:{2*(32*i+8*rq)}")
    gemm("gemm2_kernel", 224, ('ws', WS_Z2T, 896*4096, 4096), ('wsp', 0, 2048*4096, 4096), 2048, 128, 64, 2, 2, decode, epi, 4, pre)

def k_gemm3():
    def decode():
        e("s_and_b32 s5, s2, 31"); e("s_lshr_b32 s4, s2, 5")
        e("s_lshl_b32 s4, s4, 6"); e("s_lshl_b32 s5, s5, 6")
    def pre(ACC, TM, TN):
        P = ACC + 16*TM*TN
        srd(16, 'ws', WS_H, SD); srd(20, 'out', 0, SD)
        e(f"v_add_u32 v3, v17, v13"); e("v_add_u32 v3, s5, v3")
        e("v_lshlrev_b32 v20, 2, v14"); e("v_add_u32 v20, v20, v16"); e("v_add_u32 v20, s4, v20"); e("v_lshlrev_b32 v20, 1, v20")
        e("v_mul_u32_u24 v3, 896, v3"); e(f"v_add_u32 v{P+33}, v3, v20")
        for rq in range(4):
            e(f"buffer_load_dwordx2 v[{P+2*rq}:{P+2*rq+1}], v{P+33}, s[16:19], 0 offen offset:{16*rq}")
    def epi(ACC, TM, TN):
        P = ACC + 16*TM*TN
        for rq in range(4):
            a = ACC + 4*rq
            for r in range(4): rnd(a+r, 25)
            for r in range(4):
                src = P + 2*rq + r//2
                e(f"v_and_b32 v28, 0xffff0000, v{src}" if r & 1 else f"v_lshlrev_b32 v28, 16, v{src}")
                e(f"v_add_f32 v{a+r}, v{a+r}, v28")
            e(f"v_cvt_pk_bf16_f32 v{a}, v{a}, v{a+1}"); e(f"v_cvt_pk_bf16_f32 v{a+1}, v{a+2}, v{a+3}")
            e(f"buffer_store_dwordx2 v[{a}:{a+1}], v{P+33}, s[20:23], 0 offen offset:{16*rq}")
    gemm("gemm3_kernel", 224, ('ws', WS_WOUTT, 448*1792, 1792), ('ws', WS_U, 2048*1792, 1792), 896, 64, 64, 2, 2, decode, epi, 4, pre)

k_prep(); k_conv(); k_hln(); k_gemm1(); k_ln2(); k_gemm2(); k_gemm3()
hdr = open(OUT + ".ref").read().split("; Override launch")[0]
txt = hdr + "\n".join(launches) + '\n.amdgcn_target "amdgcn-amd-amdhsa--gfx950"\n.text\n' + "\n".join(L) + '\n.p2align 8\n.section .rodata,"a"\n' + "\n".join(descs) + "\n"
open(OUT, "w").write(txt)
print("wrote", len(txt), "bytes")
```

```python
import sys
OUT = "sequential_preLN__ssm_conv_h3__mixer_gmlp__prompt.s"
MB = 1 << 20
WS_KVT, WS_YT, WS_H, WS_HN, WS_WINT, WS_WOUTT = 0, 2*MB, 4*MB, 6*MB, 8*MB, 10*MB
WS_Z, WS_Z2T, WS_U = 12*MB, 20*MB, 24*MB
SD = 2048*448*2
ARG = dict(q=0, k=8, v=16, shk=24, ssmk=32, ssmD=40, x=48, win=56, wsp=64, bsp=72, wout=80, out=88, dbg=96, ws=104)

L = []
def e(s): L.append("    " + s)
def lab(s): L.append(s + ":")
launches = []
descs = []

def kstart(name, grid, lds, nwg_guard, blk=256):
    launches.append(f"; @launch kernel={name} grid=({grid},1,1) block=({blk},1,1) lds={lds}")
    L.append(f".globl {name}\n.p2align 8\n.type {name},@function\n{name}:")
    e(f"s_cmp_ge_u32 s2, {nwg_guard}")
    e(f"s_cbranch_scc1 {name}_end")
    e("s_load_dwordx16 s[64:79], s[0:1], 0"); e("s_load_dwordx8 s[80:87], s[0:1], 64"); e("s_load_dwordx4 s[88:91], s[0:1], 96")
    e("s_waitcnt lgkmcnt(0)")

def kend(name, vgpr):
    lab(f"{name}_end")
    e("s_endpgm")
    v = (vgpr + 3)//4*4
    descs.append(f""".p2align 6
.amdhsa_kernel {name}
  .amdhsa_next_free_vgpr {v}
  .amdhsa_next_free_sgpr 102
  .amdhsa_accum_offset {v}
  .amdhsa_group_segment_fixed_size 0
  .amdhsa_kernarg_size 112
  .amdhsa_user_sgpr_count 2
  .amdhsa_user_sgpr_kernarg_segment_ptr 1
  .amdhsa_system_sgpr_workgroup_id_x 1
.end_amdhsa_kernel""")

def srd(s, arg, off, size):
    b = 64 + ARG[arg]//4
    e(f"s_add_u32 s{s}, s{b}, {off}")
    e(f"s_addc_u32 s{s+1}, s{b+1}, 0")
    e(f"s_mov_b32 s{s+2}, {size}")
    e(f"s_mov_b32 s{s+3}, 0x00020000")

def rnd(v, t):
    e(f"v_cvt_pk_bf16_f32 v{t}, v{v}, v{v}")
    e(f"v_lshlrev_b32 v{v}, 16, v{t}")

def wave_sum(v, t):
    for off in (0x041F, 0x081F, 0x101F, 0x201F, 0x401F):
        e(f"ds_swizzle_b32 v{t}, v{v} offset:{off:#x}")
        e("s_waitcnt lgkmcnt(0)")
        e(f"v_add_f32 v{v}, v{v}, v{t}")
    e("s_nop 1")
    e(f"v_readlane_b32 s98, v{v}, 0")
    e(f"v_readlane_b32 s99, v{v}, 32")
    e("s_nop 3")
    e(f"v_mov_b32 v{v}, s98")
    e(f"v_add_f32 v{v}, s99, v{v}")

def emit_tr():
    lab("prep_tr")
    e("v_and_b32 v1, 63, v0"); e("v_lshrrev_b32 v2, 6, v0")
    e("s_cmp_ge_u32 s2, 644")
    e("s_cbranch_scc1 prep_tr2")
    srd(8, 'win', 0, 448*1792*2); srd(20, 'ws', WS_WINT, 448*1792*2)
    e("s_sub_u32 s4, s2, 448")
    e("s_mul_i32 s5, s4, 9363"); e("s_lshr_b32 s5, s5, 16")
    e("s_mul_i32 s6, s5, 7"); e("s_sub_u32 s6, s4, s6")
    e("s_mov_b32 s24, 3584"); e("s_mov_b32 s25, 896")
    e("s_branch prep_trc")
    lab("prep_tr2")
    srd(8, 'wout', 0, 896*448*2); srd(20, 'ws', WS_WOUTT, 896*448*2)
    e("s_sub_u32 s4, s2, 644")
    e("s_mul_i32 s5, s4, 4682"); e("s_lshr_b32 s5, s5, 16")
    e("s_mul_i32 s6, s5, 14"); e("s_sub_u32 s6, s4, s6")
    e("s_mov_b32 s24, 896"); e("s_mov_b32 s25, 1792")
    lab("prep_trc")
    e("s_lshl_b32 s5, s5, 6"); e("s_lshl_b32 s6, s6, 6")
    e("v_add_u32 v3, s5, v1")
    e("v_lshlrev_b32 v4, 4, v2"); e("v_add_u32 v4, s6, v4")
    e("v_mul_lo_u32 v5, v4, s24")
    e("v_lshlrev_b32 v6, 1, v3"); e("v_add_u32 v5, v5, v6")
    for i in range(16):
        e(f"buffer_load_ushort v{20+i}, v5, s[8:11], 0 offen")
        e("v_add_u32 v5, s24, v5")
    e("s_waitcnt vmcnt(0)")
    for i in range(8):
        e(f"v_lshl_or_b32 v{40+i}, v{21+2*i}, 16, v{20+2*i}")
    e("v_mul_lo_u32 v5, v3, s25")
    e("v_lshlrev_b32 v6, 1, v4"); e("v_add_u32 v5, v5, v6")
    e("buffer_store_dwordx4 v[40:43], v5, s[20:23], 0 offen")
    e("buffer_store_dwordx4 v[44:47], v5, s[20:23], 0 offen offset:16")

XR, KC, KCS, YACC = 0, 10240, 4160, 10240+33280
def k_conv():
    n = "conv_kernel"
    kstart(n, 742, YACC+8192, 742)
    e("s_cmp_ge_u32 s2, 448"); e("s_cbranch_scc1 prep_tr")
    srd(8, 'k', 0, SD); srd(32, 'v', 0, SD); srd(28, 'shk', 0, 448*8)
    srd(12, 'ssmk', 0, 448*4096); srd(16, 'ssmD', 0, 896); srd(20, 'ws', WS_YT, SD)
    e("s_lshl_b32 s4, s2, 12")
    e("v_lshlrev_b32 v1, 4, v0")
    e("s_lshl_b32 s5, s2, 3"); e("v_mov_b32 v2, s5")
    e("buffer_load_dwordx2 v[6:7], v2, s[28:31], 0 offen")
    e("v_lshlrev_b32 v4, 3, v0")
    e("s_lshl_b32 s5, s2, 1")
    for i in range(11):
        e(f"v_add_u32 v9, {i-3}, v4" if i >= 3 else f"v_subrev_u32 v9, {3-i}, v4")
        e("v_max_i32 v10, 0, v9"); e("v_mul_u32_u24 v10, 896, v10")
        e(f"buffer_load_ushort v{64+i}, v10, s[8:11], s5 offen")
        if i >= 3: e(f"buffer_load_ushort v{76+i-3}, v10, s[32:35], s5 offen")
    e("buffer_load_dwordx4 v[48:51], v1, s[12:15], s4 offen")
    e("buffer_load_dwordx4 v[52:55], v1, s[12:15], s4 offen offset:16")
    e("s_lshl_b32 s5, s2, 1")
    e("v_mov_b32 v2, s5")
    e("buffer_load_ushort v3, v2, s[16:19], 0 offen")
    e("v_mov_b32 v12, 0"); e("v_mov_b32 v13, 0"); e("v_mov_b32 v14, 0"); e("v_mov_b32 v15, 0")
    e(f"ds_write_b128 v1, v[12:15] offset:{XR}")
    e(f"ds_write_b128 v1, v[12:15] offset:{YACC}")
    e(f"ds_write_b128 v1, v[12:15] offset:{YACC+4096}")
    e("v_cmp_gt_u32 vcc, 64, v0")
    e("s_and_saveexec_b64 s[24:25], vcc")
    e(f"ds_write_b128 v1, v[12:15] offset:{XR+4096}")
    e("v_lshrrev_b32 v16, 2, v0"); e(f"v_mul_u32_u24 v16, {KCS}, v16")
    e("v_and_b32 v17, 3, v0"); e("v_lshlrev_b32 v17, 4, v17"); e("v_add_u32 v16, v16, v17")
    e("v_cmp_gt_u32 vcc, 32, v0")
    e("s_and_b64 exec, exec, vcc")
    e(f"ds_write_b128 v16, v[12:15] offset:{KC}")
    e("s_mov_b64 exec, s[24:25]")
    e("s_waitcnt vmcnt(0) lgkmcnt(0)")
    e("v_cmp_ne_u32 vcc, 0, v0"); e("s_nop 1")
    for i in range(3): e(f"v_cndmask_b32 v{64+i}, 0, v{64+i}, vcc")
    for i in range(11): e(f"v_lshlrev_b32 v{64+i}, 16, v{64+i}")
    for i in range(8): e(f"v_lshlrev_b32 v{76+i}, 16, v{76+i}")
    e("v_lshlrev_b32 v84, 16, v6"); e("v_and_b32 v85, 0xffff0000, v6"); e("v_lshlrev_b32 v86, 16, v7"); e("v_and_b32 v87, 0xffff0000, v7")
    for i in range(8):
        e(f"v_mul_f32 v88, v{64+i}, v87"); rnd(88, 9)
        e(f"v_mul_f32 v89, v{65+i}, v86"); rnd(89, 9)
        e("v_add_f32 v88, v88, v89"); rnd(88, 9)
        e(f"v_mul_f32 v89, v{66+i}, v85"); rnd(89, 9)
        e("v_add_f32 v88, v88, v89"); rnd(88, 9)
        e(f"v_mul_f32 v89, v{67+i}, v84"); rnd(89, 9)
        e("v_add_f32 v88, v88, v89"); rnd(88, 9)
        e(f"v_mul_f32 v{90+i}, v88, v{76+i}")
    for i in range(4): e(f"v_cvt_pk_bf16_f32 v{4+i}, v{90+2*i}, v{91+2*i}")
    e("s_barrier")
    e("v_alignbit_b32 v12, v7, v7, 16"); e("v_alignbit_b32 v13, v6, v6, 16")
    e("v_alignbit_b32 v14, v5, v5, 16"); e("v_alignbit_b32 v15, v4, v4, 16")
    e("v_lshrrev_b32 v16, 2, v0"); e("v_add_u32 v16, 64, v16"); e("v_mul_u32_u24 v16, 80, v16")
    e("v_and_b32 v17, 3, v0"); e("v_lshlrev_b32 v17, 4, v17"); e("v_sub_u32 v17, 48, v17")
    e("v_add_u32 v16, v16, v17")
    e(f"ds_write_b128 v16, v[12:15] offset:{XR}")
    e("v_lshlrev_b32 v16, 4, v0")
    for j in range(8):
        if j & 1:
            for c in range(4): e(f"v_alignbit_b32 v{56+c}, v{48+j//2+c+1}, v{48+j//2+c}, 16")
            e(f"ds_write_b128 v16, v[56:59] offset:{KC + j*KCS + 64}")
        elif (j//2) % 2 == 0:
            e(f"ds_write_b128 v16, v[{48+j//2}:{51+j//2}] offset:{KC + j*KCS + 64}")
        else:
            for c in range(4): e(f"v_mov_b32 v{60+c}, v{48+j//2+c}")
            e(f"ds_write_b128 v16, v[60:63] offset:{KC + j*KCS + 64}")
    e("v_cmp_eq_u32 vcc, 0, v0"); e("s_and_saveexec_b64 s[24:25], vcc")
    for i in range(7):
        if i & 1: e(f"v_lshrrev_b32 v17, 16, v{48+i//2}")
        for j in range(i+1, 8):
            e(f"ds_write_b16 v16, v{17 if i & 1 else 48+i//2} offset:{KC + j*KCS + 2*(32-j+i)}")
    e("s_mov_b64 exec, s[24:25]")
    e("s_waitcnt lgkmcnt(0)")
    e("s_barrier")
    e("v_and_b32 v16, 31, v0")
    e("v_bfe_u32 v17, v0, 5, 1")
    e("v_lshrrev_b32 v18, 6, v0")
    e("v_add_u32 v19, 36, v16"); e("v_sub_u32 v19, v19, v18"); e("v_mul_u32_u24 v19, 80, v19")
    e("v_lshlrev_b32 v20, 4, v17"); e("v_add_u32 v19, v19, v20")
    e("v_add_u32 v21, 1, v16"); e("v_and_b32 v22, 7, v21"); e(f"v_mul_u32_u24 v22, {KCS}, v22")
    e("v_lshrrev_b32 v21, 3, v21"); e("v_add_u32 v21, v21, v17"); e("v_lshlrev_b32 v21, 4, v21")
    e("v_add_u32 v22, v22, v21"); e("v_lshlrev_b32 v21, 6, v18"); e("v_add_u32 v22, v22, v21")
    for i in range(32): e(f"v_mov_b32 v{80+i}, 0")
    def crd(it):
        ao = 320*(15-it); b = 24*(it & 1) + 24
        for kk in range(2):
            e(f"ds_read_b128 v[{b+4*kk}:{b+3+4*kk}], v22 offset:{KC + 256*it + 32*kk}")
            e(f"ds_read_b128 v[{b+8+4*kk}:{b+11+4*kk}], v19 offset:{XR + ao + 32*kk}")
        if it < 8:
            for kk in range(2): e(f"ds_read_b128 v[{b+16+4*kk}:{b+19+4*kk}], v19 offset:{XR + ao - 2560 + 32*kk}")
        return 6 if it < 8 else 4
    crd(0)
    for it in range(16):
        b = 24*(it & 1) + 24
        if it < 15: e(f"s_waitcnt lgkmcnt({crd(it+1)})")
        else: e("s_waitcnt lgkmcnt(0)")
        for kk in range(2):
            e(f"v_mfma_f32_32x32x16_bf16 v[96:111], v[{b+8+4*kk}:{b+11+4*kk}], v[{b+4*kk}:{b+3+4*kk}], v[96:111]")
            if it < 8:
                e(f"v_mfma_f32_32x32x16_bf16 v[80:95], v[{b+16+4*kk}:{b+19+4*kk}], v[{b+4*kk}:{b+3+4*kk}], v[80:95]")
    e("s_nop 15"); e("s_nop 3")
    e("s_barrier")
    e("v_lshlrev_b32 v20, 7, v17"); e("v_add_u32 v20, v20, v16"); e("v_lshlrev_b32 v20, 2, v20")
    e("v_lshlrev_b32 v21, 13, v18"); e("v_add_u32 v20, v20, v21")
    for tile in range(2):
        for i in range(16):
            a = 32*tile + 8*(i >> 2) + (i & 3)
            e(f"ds_write_b32 v20, v{(80 if tile == 0 else 96)+i} offset:{KC + 128*a}")
    e("s_waitcnt lgkmcnt(0)")
    e("s_barrier")
    e("v_lshlrev_b32 v20, 5, v0")
    for w in range(4):
        e(f"ds_read_b128 v[{24+8*w}:{27+8*w}], v20 offset:{KC+8192*w}")
        e(f"ds_read_b128 v[{28+8*w}:{31+8*w}], v20 offset:{KC+8192*w+16}")
    e("s_waitcnt lgkmcnt(0)")
    for w in range(1, 4):
        for i in range(8): e(f"v_add_f32 v{24+i}, v{24+i}, v{24+8*w+i}")
    e("v_lshlrev_b32 v3, 16, v3")
    e("s_waitcnt lgkmcnt(0)")
    for i in range(8):
        kvsrc = 4 + i//2
        if i & 1: e(f"v_and_b32 v33, 0xffff0000, v{kvsrc}")
        else: e(f"v_lshlrev_b32 v33, 16, v{kvsrc}")
        e("v_mul_f32 v33, v33, v3"); rnd(33, 34)
        rnd(24+i, 34)
        e(f"v_add_f32 v{24+i}, v{24+i}, v33")
    for i in range(4): e(f"v_cvt_pk_bf16_f32 v{36+i}, v{24+2*i}, v{25+2*i}")
    e("buffer_store_dwordx4 v[36:39], v1, s[20:23], s4 offen")
    e(f"s_branch {n}_end")
    emit_tr()
    kend(n, 112)

def ln_rows(xs, n, t0, outf):
    s, m, d, t = t0, t0+1, t0+2, t0+3
    e(f"v_mov_b32 v{s}, v{xs[0]}")
    for x in xs[1:]: e(f"v_add_f32 v{s}, v{s}, v{x}")
    wave_sum(s, t)
    e(f"v_mul_f32 v{m}, {hexf(1.0/n)}, v{s}")
    e(f"v_mov_b32 v{s}, 0")
    for x in xs:
        e(f"v_sub_f32 v{d}, v{x}, v{m}")
        e(f"v_fmac_f32 v{s}, v{d}, v{d}")
    wave_sum(s, t)
    e(f"v_mul_f32 v{s}, {hexf(1.0/n)}, v{s}"); rnd(s, t)
    rnd(m, t)
    e(f"v_add_f32 v{s}, {hexf(1e-5)}, v{s}"); rnd(s, t)
    e(f"v_sqrt_f32 v{s}, v{s}"); e("s_nop 0"); rnd(s, t)
    e(f"v_rcp_f32 v{d}, v{s}"); e("s_nop 0")
    e(f"v_fma_f32 v{t}, -v{s}, v{d}, 1.0"); e(f"v_fmac_f32 v{d}, v{t}, v{d}")
    for x in xs:
        e(f"v_sub_f32 v{x}, v{x}, v{m}"); rnd(x, t)
        e(f"v_mul_f32 v{x}, v{x}, v{d}"); rnd(x, t)

import struct
def hexf(f): return "0x%08x" % struct.unpack("<I", struct.pack("<f", f))[0]

def k_hln():
    n = "hln_kernel"
    YL = 912
    kstart(n, 128, 16*YL, 128, 1024)
    srd(8, 'ws', WS_YT, SD); srd(12, 'q', 0, SD); srd(16, 'ws', WS_H, SD); srd(20, 'ws', WS_HN, SD)
    e("s_lshl_b32 s4, s2, 5")
    e("v_lshrrev_b32 v3, 1, v0"); e("v_and_b32 v2, 1, v0")
    e("v_lshlrev_b32 v4, 12, v3"); e("v_lshlrev_b32 v5, 4, v2"); e("v_add_u32 v4, v4, v5")
    e("v_cmp_gt_u32 vcc, 448, v3"); e("s_and_saveexec_b64 s[24:25], vcc")
    e("s_cbranch_execz hln_skip")
    e("buffer_load_dwordx4 v[8:11], v4, s[8:11], s4 offen")
    e("v_lshlrev_b32 v4, 1, v3"); e(f"v_mul_u32_u24 v5, {8*YL}, v2"); e("v_add_u32 v4, v4, v5")
    e("s_waitcnt vmcnt(0)")
    for i in range(8):
        if i & 1: e(f"v_lshrrev_b32 v12, 16, v{8+i//2}")
        e(f"ds_write_b16 v4, v{12 if i & 1 else 8+i//2} offset:{i*YL}")
    lab("hln_skip")
    e("s_mov_b64 exec, s[24:25]")
    e("v_and_b32 v1, 63, v0"); e("v_lshrrev_b32 v3, 6, v0")
    e("s_lshl_b32 s5, s2, 4")
    e("v_add_u32 v4, s5, v3"); e("v_mul_u32_u24 v4, 896, v4"); e("v_lshlrev_b32 v5, 1, v1"); e("v_add_u32 v4, v4, v5")
    e(f"v_mul_u32_u24 v6, {YL}, v3"); e("v_add_u32 v6, v6, v5")
    for i in range(7): e(f"buffer_load_ushort v{10+i}, v4, s[12:15], 0 offen offset:{128*i}")
    e("s_waitcnt lgkmcnt(0)"); e("s_barrier")
    for i in range(7): e(f"ds_read_u16 v{20+i}, v6 offset:{128*i}")
    e("s_waitcnt vmcnt(0) lgkmcnt(0)")
    for i in range(7):
        e(f"v_lshlrev_b32 v{10+i}, 16, v{10+i}"); e(f"v_lshlrev_b32 v{20+i}, 16, v{20+i}")
        e(f"v_mov_b32 v{30+i}, v{10+i}")
    ln_rows([30+i for i in range(7)], 448, 40, None)
    for i in range(7):
        e(f"v_mul_f32 v{30+i}, v{30+i}, v{20+i}"); rnd(30+i, 44)
        e(f"v_add_f32 v{30+i}, v{30+i}, v{10+i}"); rnd(30+i, 44)
        e(f"v_lshrrev_b32 v45, 16, v{30+i}")
        e(f"buffer_store_short v45, v4, s[16:19], 0 offen offset:{128*i}")
    ln_rows([30+i for i in range(7)], 448, 40, None)
    for i in range(7):
        e(f"v_lshrrev_b32 v45, 16, v{30+i}")
        e(f"buffer_store_short v45, v4, s[20:23], 0 offen offset:{128*i}")
    kend(n, 48)

def k_ln2():
    n = "ln2_kernel"
    TL = 48
    kstart(n, 128, 896*TL, 128, 1024)
    srd(8, 'ws', WS_Z, 2048*3584); srd(12, 'ws', WS_Z2T, 896*4096)
    e("v_and_b32 v1, 63, v0"); e("v_lshrrev_b32 v3, 6, v0")
    e("s_lshl_b32 s5, s2, 4")
    e("v_add_u32 v4, s5, v3"); e("v_mul_u32_u24 v4, 3584, v4"); e("v_lshlrev_b32 v5, 1, v1"); e("v_add_u32 v4, v4, v5")
    for i in range(14):
        e(f"buffer_load_ushort v{10+i}, v4, s[8:11], 0 offen offset:{1792+128*i}")
    e("s_waitcnt vmcnt(0)")
    for i in range(14): e(f"v_lshlrev_b32 v{10+i}, 16, v{10+i}")
    ln_rows([10+i for i in range(14)], 896, 40, None)
    e(f"v_mul_u32_u24 v6, {TL}, v1"); e("v_lshlrev_b32 v5, 1, v3"); e("v_add_u32 v6, v6, v5")
    for i in range(14):
        e(f"v_lshrrev_b32 v45, 16, v{10+i}")
        e(f"ds_write_b16 v6, v45 offset:{64*TL*i}")
    e("s_waitcnt lgkmcnt(0)"); e("s_barrier")
    e("s_lshl_b32 s4, s2, 5")
    e("v_lshrrev_b32 v1, 1, v0"); e("v_and_b32 v2, 1, v0")
    for p in range(2):
        e(f"v_add_u32 v3, {512*p}, v1")
        if p == 1:
            e("v_cmp_gt_u32 vcc, 896, v3"); e("s_and_saveexec_b64 s[24:25], vcc"); e("s_cbranch_execz ln2_kernel_end")
        e(f"v_mul_u32_u24 v4, {TL}, v3"); e("v_lshlrev_b32 v5, 4, v2"); e("v_add_u32 v4, v4, v5")
        e("ds_read_b128 v[8:11], v4")
        e("v_lshlrev_b32 v4, 12, v3"); e("v_add_u32 v4, v4, v5")
        e("s_waitcnt lgkmcnt(0)")
        e("buffer_store_dwordx4 v[8:11], v4, s[12:15], s4 offen")
    kend(n, 48)

def gemm(n, nwg, A, B, K, BM, BN, WM, WN, decode, epi, NB=3, pre=None):
    TM, TN = BM//WM//32, BN//WN//32
    ABUF, BBUF = BM*128, BN*128
    STG = ABUF + BBUF
    NI = (BM+BN)//32
    NIA = BM//32
    kstart(n, nwg, NB*STG, nwg)
    srd(8, A[0], A[1], A[2]); srd(12, B[0], B[1], B[2])
    decode()
    e(f"s_mov_b32 s26, {A[3]}"); e(f"s_mov_b32 s27, {B[3]}")
    e("v_lshrrev_b32 v15, 6, v0")
    e("v_and_b32 v1, 63, v0"); e("v_lshrrev_b32 v2, 3, v1"); e("v_and_b32 v3, 7, v1")
    e("s_nop 0"); e("v_readfirstlane_b32 s28, v15"); e("s_nop 3"); e("s_lshl_b32 s28, s28, 10")
    for i in range(NI):
        isA = i < NIA
        q = i if isA else i - NIA
        e("v_lshlrev_b32 v20, 3, v15"); e(f"v_add_u32 v20, {32*q}, v20"); e("v_add_u32 v20, v20, v2")
        e("v_bfe_u32 v21, v20, 1, 3"); e("v_xor_b32 v21, v21, v3"); e("v_lshlrev_b32 v21, 4, v21")
        e(f"v_add_u32 v20, s{4 if isA else 5}, v20"); e(f"v_mul_lo_u32 v20, v20, s{26 if isA else 27}")
        e(f"v_add_u32 v{24+i}, v20, v21")
    e("v_and_b32 v13, 31, v0"); e("v_bfe_u32 v14, v0, 5, 1")
    e(f"v_and_b32 v16, {WM-1}, v15"); e(f"v_lshrrev_b32 v17, {WM.bit_length()-1}, v15")
    e(f"v_mul_u32_u24 v16, {32*TM}, v16"); e(f"v_mul_u32_u24 v17, {32*TN}, v17")
    AR, BR = 40, 44
    for (reg, woff, base) in ((AR, 16, 0), (BR, 17, ABUF)):
        e(f"v_add_u32 v20, v{woff}, v13")
        e("v_bfe_u32 v21, v20, 1, 3")
        e("v_and_b32 v22, 1, v21"); e("v_xor_b32 v22, v22, v14"); e("v_lshlrev_b32 v22, 4, v22")
        e("v_lshlrev_b32 v20, 7, v20"); e("v_add_u32 v20, v20, v22"); e(f"v_add_u32 v20, {base}, v20")
        e("v_lshrrev_b32 v21, 1, v21")
        for kk in range(4):
            e(f"v_xor_b32 v22, {kk}, v21"); e("v_lshlrev_b32 v22, 5, v22"); e(f"v_add_u32 v{reg+kk}, v20, v22")
    FA = 48; FB = FA + 8*TM
    ACC = 96
    assert FB + 8*TN <= ACC
    for i in range(16*TM*TN): e(f"v_mov_b32 v{ACC+i}, 0")
    NS = K//64
    def dma():
        for i in range(NI):
            e(f"s_add_u32 m0, s29, {4096*i}")
            e("s_nop 0")
            e(f"buffer_load_dwordx4 v{24+i}, s[{8 if i < NIA else 12}:{11 if i < NIA else 15}], s6 offen lds")
        e("s_add_u32 s6, s6, 128")
        e(f"s_cmp_ge_u32 s6, {2*K}"); e("s_cselect_b32 s6, 0, s6")
        e(f"s_add_u32 s29, s29, {STG}")
        e(f"s_cmp_ge_u32 s29, s30")
        e(f"s_cselect_b32 s29, s28, s29")
    def rd(kk, st):
        for i in range(TM): e(f"ds_read_b128 v[{FA+4*(2*i+st)}:{FA+4*(2*i+st)+3}], v{AR+kk} offset:{4096*i}")
        for j in range(TN): e(f"ds_read_b128 v[{FB+4*(2*j+st)}:{FB+4*(2*j+st)+3}], v{BR+kk} offset:{4096*j}")
    e("s_mul_i32 s6, s2, 5"); e("s_lshr_b32 s33, s2, 3"); e("s_add_u32 s6, s6, s33")
    e(f"s_mul_hi_u32 s33, s6, {(1<<32)//NS + 1}"); e(f"s_mul_i32 s33, s33, {NS}"); e("s_sub_u32 s6, s6, s33"); e("s_lshl_b32 s6, s6, 7")
    e("s_mov_b32 s29, s28"); e(f"s_add_u32 s30, s28, {NB*STG}")
    e("s_mov_b32 s31, 0")
    e(f"s_mov_b32 s34, {-(NB-1)*STG & 0xffffffff}"); e(f"s_mov_b32 s35, {STG}")
    if pre: pre(ACC, TM, TN)
    for _ in range(NB-1): dma()
    e(f"s_waitcnt vmcnt({(NB-2)*NI})"); e("s_barrier")
    e("s_mov_b32 s7, 0")
    lab(f"{n}_loop")
    rd(0, 0)
    pend = list(range(NI))
    def one_dma():
        if not pend: return
        i = pend.pop(0)
        e(f"s_add_u32 m0, s29, {4096*i}")
        e("s_nop 0")
        e(f"buffer_load_dwordx4 v{24+i}, s[{8 if i < NIA else 12}:{11 if i < NIA else 15}], s6 offen lds")
    per = (NI + 3)//4
    for kk in range(4):
        st = kk & 1
        if kk < 3: rd(kk+1, st ^ 1); e(f"s_waitcnt lgkmcnt({TM+TN})")
        else: e("s_waitcnt lgkmcnt(0)")
        cnt = 0
        for i in range(TM):
            for j in range(TN):
                a = ACC + 16*(i*TN+j)
                e(f"v_mfma_f32_32x32x16_bf16 v[{a}:{a+15}], v[{FA+4*(2*i+st)}:{FA+4*(2*i+st)+3}], v[{FB+4*(2*j+st)}:{FB+4*(2*j+st)+3}], v[{a}:{a+15}]")
                if cnt < per: one_dma(); cnt += 1
        while cnt < per: one_dma(); cnt += 1
    assert not pend
    e("s_add_u32 s6, s6, 128")
    e(f"s_cmp_ge_u32 s6, {2*K}"); e("s_cselect_b32 s6, 0, s6")
    e(f"s_add_u32 s29, s29, {STG}")
    e(f"s_cmp_ge_u32 s29, s30")
    e(f"s_cselect_b32 s29, s28, s29")
    e("s_add_u32 s31, s31, 1"); e(f"s_cmp_eq_u32 s31, {NB}")
    e("s_cselect_b32 s33, s34, s35"); e("s_cselect_b32 s31, 0, s31")
    for kk in range(4): e(f"v_add_u32 v{AR+kk}, s33, v{AR+kk}"); e(f"v_add_u32 v{BR+kk}, s33, v{BR+kk}")
    e(f"s_waitcnt vmcnt({(NB-2)*NI})"); e("s_barrier")
    e("s_add_u32 s7, s7, 1"); e(f"s_cmp_lt_u32 s7, {NS}"); e(f"s_cbranch_scc1 {n}_loop")
    e("s_waitcnt vmcnt(0)")
    e("s_nop 15"); e("s_nop 3")
    epi(ACC, TM, TN)
    kend(n, ACC + 16*TM*TN + (40 if pre else 0))

def gelu(v, t):
    e(f"v_mul_f32 v{t}, v{v}, v{v}")
    e(f"v_fma_f32 v{t}, v{t}, s30, 1.0"); e(f"v_mul_f32 v{t}, v{t}, v{v}")
    e(f"v_mul_f32 v{t}, s31, v{t}")
    e(f"v_exp_f32 v{t}, v{t}"); e("s_nop 0")
    e(f"v_add_f32 v{t}, 1.0, v{t}")
    e(f"v_rcp_f32 v{t}, v{t}"); e("s_nop 0")
    e(f"v_mul_f32 v{v}, v{v}, v{t}")

def k_gemm1():
    def decode():
        e("s_mul_i32 s5, s2, 4682"); e("s_lshr_b32 s5, s5, 16")
        e("s_mul_i32 s4, s5, 14"); e("s_sub_u32 s4, s2, s4")
        e("s_lshl_b32 s4, s4, 7"); e("s_lshl_b32 s5, s5, 7")
    def epi(ACC, TM, TN):
        srd(16, 'ws', WS_Z, 2048*3584)
        e(f"s_mov_b32 s30, {hexf(0.044715)}"); e(f"s_mov_b32 s31, {hexf(-2*0.7978845608028654*1.4426950408889634)}")
        for j in range(TN):
            e(f"v_add_u32 v3, v17, v13"); e(f"v_add_u32 v3, {32*j}, v3"); e("v_add_u32 v3, s5, v3"); e("v_mul_u32_u24 v3, 3584, v3")
            e("v_lshlrev_b32 v20, 2, v14"); e("v_add_u32 v20, v20, v16"); e("v_add_u32 v20, s4, v20"); e("v_lshlrev_b32 v20, 1, v20")
            e("v_add_u32 v3, v3, v20")
            for i in range(TM):
                for rq in range(4):
                    a = ACC + 16*(i*TN+j) + 4*rq
                    for r in range(4): rnd(a+r, 21); gelu(a+r, 21)
                    e(f"v_cvt_pk_bf16_f32 v22, v{a}, v{a+1}"); e(f"v_cvt_pk_bf16_f32 v23, v{a+2}, v{a+3}")
                    e(f"buffer_store_dwordx2 v[22:23], v3, s[16:19], 0 offen offset:{2*(32*i+8*rq)}")
    gemm("gemm1_kernel", 224, ('ws', WS_WINT, 1792*896, 896), ('ws', WS_HN, SD, 896), 448, 128, 128, 2, 2, decode, epi, 4)

def k_gemm2():
    def decode():
        e("s_and_b32 s5, s2, 31"); e("s_lshr_b32 s4, s2, 5")
        e("s_lshl_b32 s4, s4, 7"); e("s_lshl_b32 s5, s5, 6")
    def pre(ACC, TM, TN):
        P = ACC + 16*TM*TN
        srd(16, 'ws', WS_Z, 2048*3584); srd(20, 'ws', WS_U, 2048*1792); srd(36, 'bsp', 0, 4096)
        e(f"v_add_u32 v3, v17, v13"); e("v_add_u32 v3, s5, v3")
        e("v_lshlrev_b32 v21, 1, v3")
        e(f"buffer_load_ushort v{P+32}, v21, s[36:39], 0 offen")
        e("v_lshlrev_b32 v20, 2, v14"); e("v_add_u32 v20, v20, v16"); e("v_add_u32 v20, s4, v20"); e("v_lshlrev_b32 v20, 1, v20")
        e("v_mul_u32_u24 v21, 3584, v3"); e("v_add_u32 v21, v21, v20")
        e("v_mul_u32_u24 v3, 1792, v3"); e(f"v_add_u32 v{P+33}, v3, v20")
        for i in range(TM):
            for rq in range(4):
                e(f"buffer_load_dwordx2 v[{P+2*(4*i+rq)}:{P+2*(4*i+rq)+1}], v21, s[16:19], 0 offen offset:{2*(32*i+8*rq)}")
    def epi(ACC, TM, TN):
        P = ACC + 16*TM*TN
        e(f"v_lshlrev_b32 v24, 16, v{P+32}")
        for i in range(TM):
            for rq in range(4):
                a = ACC + 16*i + 4*rq
                for r in range(4): rnd(a+r, 25); e(f"v_add_f32 v{a+r}, v{a+r}, v24"); rnd(a+r, 25)
                for r in range(4):
                    src = P + 2*(4*i+rq) + r//2
                    e(f"v_and_b32 v28, 0xffff0000, v{src}" if r & 1 else f"v_lshlrev_b32 v28, 16, v{src}")
                    e(f"v_mul_f32 v{a+r}, v{a+r}, v28")
                e(f"v_cvt_pk_bf16_f32 v{a}, v{a}, v{a+1}"); e(f"v_cvt_pk_bf16_f32 v{a+1}, v{a+2}, v{a+3}")
                e(f"buffer_store_dwordx2 v[{a}:{a+1}], v{P+33}, s[20:23], 0 offen offset:{2*(32*i+8*rq)}")
    gemm("gemm2_kernel", 224, ('ws', WS_Z2T, 896*4096, 4096), ('wsp', 0, 2048*4096, 4096), 2048, 128, 64, 2, 2, decode, epi, 4, pre)

def k_gemm3():
    def decode():
        e("s_and_b32 s5, s2, 31"); e("s_lshr_b32 s4, s2, 5")
        e("s_lshl_b32 s4, s4, 6"); e("s_lshl_b32 s5, s5, 6")
    def pre(ACC, TM, TN):
        P = ACC + 16*TM*TN
        srd(16, 'ws', WS_H, SD); srd(20, 'out', 0, SD)
        e(f"v_add_u32 v3, v17, v13"); e("v_add_u32 v3, s5, v3")
        e("v_lshlrev_b32 v20, 2, v14"); e("v_add_u32 v20, v20, v16"); e("v_add_u32 v20, s4, v20"); e("v_lshlrev_b32 v20, 1, v20")
        e("v_mul_u32_u24 v3, 896, v3"); e(f"v_add_u32 v{P+33}, v3, v20")
        for rq in range(4):
            e(f"buffer_load_dwordx2 v[{P+2*rq}:{P+2*rq+1}], v{P+33}, s[16:19], 0 offen offset:{16*rq}")
    def epi(ACC, TM, TN):
        P = ACC + 16*TM*TN
        for rq in range(4):
            a = ACC + 4*rq
            for r in range(4): rnd(a+r, 25)
            for r in range(4):
                src = P + 2*rq + r//2
                e(f"v_and_b32 v28, 0xffff0000, v{src}" if r & 1 else f"v_lshlrev_b32 v28, 16, v{src}")
                e(f"v_add_f32 v{a+r}, v{a+r}, v28")
            e(f"v_cvt_pk_bf16_f32 v{a}, v{a}, v{a+1}"); e(f"v_cvt_pk_bf16_f32 v{a+1}, v{a+2}, v{a+3}")
            e(f"buffer_store_dwordx2 v[{a}:{a+1}], v{P+33}, s[20:23], 0 offen offset:{16*rq}")
    gemm("gemm3_kernel", 224, ('ws', WS_WOUTT, 448*1792, 1792), ('ws', WS_U, 2048*1792, 1792), 896, 64, 64, 2, 2, decode, epi, 4, pre)

k_conv(); k_hln(); k_gemm1(); k_ln2(); k_gemm2(); k_gemm3()
hdr = open(OUT + ".ref").read().split("; Override launch")[0]
txt = hdr + "\n".join(launches) + '\n.amdgcn_target "amdgcn-amd-amdhsa--gfx950"\n.text\n' + "\n".join(L) + '\n.p2align 8\n.section .rodata,"a"\n' + "\n".join(descs) + "\n"
open(OUT, "w").write(txt)
print("wrote", len(txt), "bytes")
```

```python
import sys
OUT = "sequential_preLN__ssm_conv_h3__mixer_gmlp__prompt.s"
MB = 1 << 20
WS_KVT, WS_YT, WS_H, WS_HN, WS_WINT, WS_WOUTT = 0, 2*MB, 4*MB, 6*MB, 8*MB, 10*MB
WS_Z, WS_Z2T, WS_U = 12*MB, 20*MB, 24*MB
SD = 2048*448*2
ARG = dict(q=0, k=8, v=16, shk=24, ssmk=32, ssmD=40, x=48, win=56, wsp=64, bsp=72, wout=80, out=88, dbg=96, ws=104)

L = []
def e(s): L.append("    " + s)
def lab(s): L.append(s + ":")
launches = []
descs = []

def kstart(name, grid, lds, nwg_guard, blk=256):
    launches.append(f"; @launch kernel={name} grid=({grid},1,1) block=({blk},1,1) lds={lds}")
    L.append(f".globl {name}\n.p2align 8\n.type {name},@function\n{name}:")
    e(f"s_cmp_ge_u32 s2, {nwg_guard}")
    e(f"s_cbranch_scc1 {name}_end")
    e("s_load_dwordx16 s[64:79], s[0:1], 0"); e("s_load_dwordx8 s[80:87], s[0:1], 64"); e("s_load_dwordx4 s[88:91], s[0:1], 96")
    e("s_waitcnt lgkmcnt(0)")

def kend(name, vgpr):
    lab(f"{name}_end")
    e("s_endpgm")
    v = (vgpr + 3)//4*4
    descs.append(f""".p2align 6
.amdhsa_kernel {name}
  .amdhsa_next_free_vgpr {v}
  .amdhsa_next_free_sgpr 102
  .amdhsa_accum_offset {v}
  .amdhsa_group_segment_fixed_size 0
  .amdhsa_kernarg_size 112
  .amdhsa_user_sgpr_count 2
  .amdhsa_user_sgpr_kernarg_segment_ptr 1
  .amdhsa_system_sgpr_workgroup_id_x 1
.end_amdhsa_kernel""")

def srd(s, arg, off, size):
    b = 64 + ARG[arg]//4
    e(f"s_add_u32 s{s}, s{b}, {off}")
    e(f"s_addc_u32 s{s+1}, s{b+1}, 0")
    e(f"s_mov_b32 s{s+2}, {size}")
    e(f"s_mov_b32 s{s+3}, 0x00020000")

def rnd(v, t):
    e(f"v_cvt_pk_bf16_f32 v{t}, v{v}, v{v}")
    e(f"v_lshlrev_b32 v{v}, 16, v{t}")

def wave_sum(v, t):
    for off in (0x041F, 0x081F, 0x101F, 0x201F, 0x401F):
        e(f"ds_swizzle_b32 v{t}, v{v} offset:{off:#x}")
        e("s_waitcnt lgkmcnt(0)")
        e(f"v_add_f32 v{v}, v{v}, v{t}")
    e("s_nop 1")
    e(f"v_readlane_b32 s98, v{v}, 0")
    e(f"v_readlane_b32 s99, v{v}, 32")
    e("s_nop 3")
    e(f"v_mov_b32 v{v}, s98")
    e(f"v_add_f32 v{v}, s99, v{v}")

def k_prep():
    n = "prep_kernel"
    kstart(n, 518, 0, 518)
    e("v_and_b32 v1, 63, v0")
    e("v_lshrrev_b32 v2, 6, v0")
    e(f"s_cmp_ge_u32 s2, 224")
    e(f"s_cbranch_scc1 prep_tr")
    srd(8, 'k', 0, SD); srd(12, 'v', 0, SD); srd(16, 'shk', 0, 448*8); srd(20, 'ws', WS_KVT, SD)
    e("s_and_b32 s4, s2, 31")
    e("s_lshr_b32 s5, s2, 5")
    e("s_lshl_b32 s4, s4, 6")
    e("s_lshl_b32 s5, s5, 6")
    e("v_add_u32 v3, s5, v1")
    e("v_lshlrev_b32 v4, 4, v2")
    e("v_add_u32 v4, s4, v4")
    e("v_lshlrev_b32 v5, 3, v3")
    e("buffer_load_dwordx2 v[6:7], v5, s[16:19], 0 offen")
    e("v_lshlrev_b32 v8, 1, v3")
    for i in range(19):
        e(f"v_add_u32 v9, {i-3}, v4" if i >= 3 else f"v_subrev_u32 v9, {3-i}, v4")
        e("v_max_i32 v10, 0, v9")
        e("v_mul_u32_u24 v10, 896, v10")
        e("v_add_u32 v10, v10, v8")
        e(f"buffer_load_ushort v{20+i}, v10, s[8:11], 0 offen")
        if i >= 3:
            e(f"buffer_load_ushort v{40+i-3}, v10, s[12:15], 0 offen")
    e("s_waitcnt vmcnt(0)")
    for i in range(3):
        e(f"v_subrev_u32 v9, {3-i}, v4")
        e("v_cmp_le_i32 vcc, 0, v9")
        e("s_nop 1")
        e(f"v_cndmask_b32 v{20+i}, 0, v{20+i}, vcc")
    for i in range(19): e(f"v_lshlrev_b32 v{20+i}, 16, v{20+i}")
    for i in range(16): e(f"v_lshlrev_b32 v{40+i}, 16, v{40+i}")
    e("v_lshlrev_b32 v11, 16, v6")
    e("v_and_b32 v12, 0xffff0000, v6")
    e("v_lshlrev_b32 v13, 16, v7")
    e("v_and_b32 v14, 0xffff0000, v7")
    for i in range(16):
        e(f"v_mul_f32 v15, v{20+i}, v14"); rnd(15, 9)
        e(f"v_mul_f32 v16, v{21+i}, v13"); rnd(16, 9)
        e("v_add_f32 v15, v15, v16"); rnd(15, 9)
        e(f"v_mul_f32 v16, v{22+i}, v12"); rnd(16, 9)
        e("v_add_f32 v15, v15, v16"); rnd(15, 9)
        e(f"v_mul_f32 v16, v{23+i}, v11"); rnd(16, 9)
        e("v_add_f32 v15, v15, v16"); rnd(15, 9)
        e(f"v_mul_f32 v{60+i}, v15, v{40+i}")
    for i in range(8): e(f"v_cvt_pk_bf16_f32 v{80+i}, v{60+2*i}, v{61+2*i}")
    e("v_lshlrev_b32 v9, 12, v3")
    e("v_lshlrev_b32 v10, 1, v4")
    e("v_add_u32 v9, v9, v10")
    e("buffer_store_dwordx4 v[80:83], v9, s[20:23], 0 offen")
    e("buffer_store_dwordx4 v[84:87], v9, s[20:23], 0 offen offset:16")
    e(f"s_branch {n}_end")
    lab("prep_tr")
    e("s_cmp_ge_u32 s2, 420")
    e("s_cbranch_scc1 prep_tr2")
    srd(8, 'win', 0, 448*1792*2); srd(20, 'ws', WS_WINT, 448*1792*2)
    e("s_sub_u32 s4, s2, 224")
    e("s_mul_i32 s5, s4, 9363"); e("s_lshr_b32 s5, s5, 16")
    e("s_mul_i32 s6, s5, 7"); e("s_sub_u32 s6, s4, s6")
    e("s_mov_b32 s24, 3584"); e("s_mov_b32 s25, 896")
    e("s_branch prep_trc")
    lab("prep_tr2")
    srd(8, 'wout', 0, 896*448*2); srd(20, 'ws', WS_WOUTT, 896*448*2)
    e("s_sub_u32 s4, s2, 420")
    e("s_mul_i32 s5, s4, 4682"); e("s_lshr_b32 s5, s5, 16")
    e("s_mul_i32 s6, s5, 14"); e("s_sub_u32 s6, s4, s6")
    e("s_mov_b32 s24, 896"); e("s_mov_b32 s25, 1792")
    lab("prep_trc")
    e("s_lshl_b32 s5, s5, 6"); e("s_lshl_b32 s6, s6, 6")
    e("v_add_u32 v3, s5, v1")
    e("v_lshlrev_b32 v4, 4, v2"); e("v_add_u32 v4, s6, v4")
    e("v_mul_lo_u32 v5, v4, s24")
    e("v_lshlrev_b32 v6, 1, v3"); e("v_add_u32 v5, v5, v6")
    for i in range(16):
        e(f"buffer_load_ushort v{20+i}, v5, s[8:11], 0 offen")
        e("v_add_u32 v5, s24, v5")
    e("s_waitcnt vmcnt(0)")
    for i in range(8):
        e(f"v_lshl_or_b32 v{40+i}, v{21+2*i}, 16, v{20+2*i}")
    e("v_mul_lo_u32 v5, v3, s25")
    e("v_lshlrev_b32 v6, 1, v4"); e("v_add_u32 v5, v5, v6")
    e("buffer_store_dwordx4 v[40:43], v5, s[20:23], 0 offen")
    e("buffer_store_dwordx4 v[44:47], v5, s[20:23], 0 offen offset:16")
    kend(n, 96)

XR, KC, KCS, YACC = 0, 10240, 4160, 10240+33280
def k_conv():
    n = "conv_kernel"
    kstart(n, 448, YACC+8192, 448)
    srd(8, 'ws', WS_KVT, SD); srd(12, 'ssmk', 0, 448*4096); srd(16, 'ssmD', 0, 896); srd(20, 'ws', WS_YT, SD)
    e("s_lshl_b32 s4, s2, 12")
    e("v_lshlrev_b32 v1, 4, v0")
    e("buffer_load_dwordx4 v[4:7], v1, s[8:11], s4 offen")
    e("buffer_load_dwordx4 v[48:51], v1, s[12:15], s4 offen")
    e("buffer_load_dwordx4 v[52:55], v1, s[12:15], s4 offen offset:16")
    e("s_lshl_b32 s5, s2, 1")
    e("v_mov_b32 v2, s5")
    e("buffer_load_ushort v3, v2, s[16:19], 0 offen")
    e("v_mov_b32 v12, 0"); e("v_mov_b32 v13, 0"); e("v_mov_b32 v14, 0"); e("v_mov_b32 v15, 0")
    e(f"ds_write_b128 v1, v[12:15] offset:{XR}")
    e(f"ds_write_b128 v1, v[12:15] offset:{YACC}")
    e(f"ds_write_b128 v1, v[12:15] offset:{YACC+4096}")
    e("v_cmp_gt_u32 vcc, 64, v0")
    e("s_and_saveexec_b64 s[24:25], vcc")
    e(f"ds_write_b128 v1, v[12:15] offset:{XR+4096}")
    e("v_lshrrev_b32 v16, 2, v0"); e(f"v_mul_u32_u24 v16, {KCS}, v16")
    e("v_and_b32 v17, 3, v0"); e("v_lshlrev_b32 v17, 4, v17"); e("v_add_u32 v16, v16, v17")
    e("v_cmp_gt_u32 vcc, 32, v0")
    e("s_and_b64 exec, exec, vcc")
    e(f"ds_write_b128 v16, v[12:15] offset:{KC}")
    e("s_mov_b64 exec, s[24:25]")
    e("s_waitcnt vmcnt(0) lgkmcnt(0)")
    e("s_barrier")
    e("v_alignbit_b32 v12, v7, v7, 16"); e("v_alignbit_b32 v13, v6, v6, 16")
    e("v_alignbit_b32 v14, v5, v5, 16"); e("v_alignbit_b32 v15, v4, v4, 16")
    e("v_lshrrev_b32 v16, 2, v0"); e("v_add_u32 v16, 64, v16"); e("v_mul_u32_u24 v16, 80, v16")
    e("v_and_b32 v17, 3, v0"); e("v_lshlrev_b32 v17, 4, v17"); e("v_sub_u32 v17, 48, v17")
    e("v_add_u32 v16, v16, v17")
    e(f"ds_write_b128 v16, v[12:15] offset:{XR}")
    e("v_lshlrev_b32 v16, 4, v0")
    for j in range(8):
        if j & 1:
            for c in range(4): e(f"v_alignbit_b32 v{56+c}, v{48+j//2+c+1}, v{48+j//2+c}, 16")
            e(f"ds_write_b128 v16, v[56:59] offset:{KC + j*KCS + 64}")
        elif (j//2) % 2 == 0:
            e(f"ds_write_b128 v16, v[{48+j//2}:{51+j//2}] offset:{KC + j*KCS + 64}")
        else:
            for c in range(4): e(f"v_mov_b32 v{60+c}, v{48+j//2+c}")
            e(f"ds_write_b128 v16, v[60:63] offset:{KC + j*KCS + 64}")
    e("v_cmp_eq_u32 vcc, 0, v0"); e("s_and_saveexec_b64 s[24:25], vcc")
    for i in range(7):
        if i & 1: e(f"v_lshrrev_b32 v17, 16, v{48+i//2}")
        for j in range(i+1, 8):
            e(f"ds_write_b16 v16, v{17 if i & 1 else 48+i//2} offset:{KC + j*KCS + 2*(32-j+i)}")
    e("s_mov_b64 exec, s[24:25]")
    e("s_waitcnt lgkmcnt(0)")
    e("s_barrier")
    e("v_and_b32 v16, 31, v0")
    e("v_bfe_u32 v17, v0, 5, 1")
    e("v_lshrrev_b32 v18, 6, v0")
    e("v_add_u32 v19, 36, v16"); e("v_sub_u32 v19, v19, v18"); e("v_mul_u32_u24 v19, 80, v19")
    e("v_lshlrev_b32 v20, 4, v17"); e("v_add_u32 v19, v19, v20")
    e("v_add_u32 v21, 1, v16"); e("v_and_b32 v22, 7, v21"); e(f"v_mul_u32_u24 v22, {KCS}, v22")
    e("v_lshrrev_b32 v21, 3, v21"); e("v_add_u32 v21, v21, v17"); e("v_lshlrev_b32 v21, 4, v21")
    e("v_add_u32 v22, v22, v21"); e("v_lshlrev_b32 v21, 6, v18"); e("v_add_u32 v22, v22, v21")
    for i in range(32): e(f"v_mov_b32 v{80+i}, 0")
    def crd(it):
        ao = 320*(15-it); b = 24*(it & 1) + 24
        for kk in range(2):
            e(f"ds_read_b128 v[{b+4*kk}:{b+3+4*kk}], v22 offset:{KC + 256*it + 32*kk}")
            e(f"ds_read_b128 v[{b+8+4*kk}:{b+11+4*kk}], v19 offset:{XR + ao + 32*kk}")
        if it < 8:
            for kk in range(2): e(f"ds_read_b128 v[{b+16+4*kk}:{b+19+4*kk}], v19 offset:{XR + ao - 2560 + 32*kk}")
        return 6 if it < 8 else 4
    crd(0)
    for it in range(16):
        b = 24*(it & 1) + 24
        if it < 15: e(f"s_waitcnt lgkmcnt({crd(it+1)})")
        else: e("s_waitcnt lgkmcnt(0)")
        for kk in range(2):
            e(f"v_mfma_f32_32x32x16_bf16 v[96:111], v[{b+8+4*kk}:{b+11+4*kk}], v[{b+4*kk}:{b+3+4*kk}], v[96:111]")
            if it < 8:
                e(f"v_mfma_f32_32x32x16_bf16 v[80:95], v[{b+16+4*kk}:{b+19+4*kk}], v[{b+4*kk}:{b+3+4*kk}], v[80:95]")
    e("s_nop 15"); e("s_nop 3")
    e("s_barrier")
    e("v_lshlrev_b32 v20, 7, v17"); e("v_add_u32 v20, v20, v16"); e("v_lshlrev_b32 v20, 2, v20")
    e("v_lshlrev_b32 v21, 13, v18"); e("v_add_u32 v20, v20, v21")
    for tile in range(2):
        for i in range(16):
            a = 32*tile + 8*(i >> 2) + (i & 3)
            e(f"ds_write_b32 v20, v{(80 if tile == 0 else 96)+i} offset:{KC + 128*a}")
    e("s_waitcnt lgkmcnt(0)")
    e("s_barrier")
    e("v_lshlrev_b32 v20, 5, v0")
    for w in range(4):
        e(f"ds_read_b128 v[{24+8*w}:{27+8*w}], v20 offset:{KC+8192*w}")
        e(f"ds_read_b128 v[{28+8*w}:{31+8*w}], v20 offset:{KC+8192*w+16}")
    e("s_waitcnt lgkmcnt(0)")
    for w in range(1, 4):
        for i in range(8): e(f"v_add_f32 v{24+i}, v{24+i}, v{24+8*w+i}")
    e("v_lshlrev_b32 v3, 16, v3")
    e("s_waitcnt lgkmcnt(0)")
    for i in range(8):
        kvsrc = 4 + i//2
        if i & 1: e(f"v_and_b32 v33, 0xffff0000, v{kvsrc}")
        else: e(f"v_lshlrev_b32 v33, 16, v{kvsrc}")
        e("v_mul_f32 v33, v33, v3"); rnd(33, 34)
        rnd(24+i, 34)
        e(f"v_add_f32 v{24+i}, v{24+i}, v33")
    for i in range(4): e(f"v_cvt_pk_bf16_f32 v{36+i}, v{24+2*i}, v{25+2*i}")
    e("buffer_store_dwordx4 v[36:39], v1, s[20:23], s4 offen")
    kend(n, 112)

def ln_rows(xs, n, t0, outf):
    s, m, d, t = t0, t0+1, t0+2, t0+3
    e(f"v_mov_b32 v{s}, v{xs[0]}")
    for x in xs[1:]: e(f"v_add_f32 v{s}, v{s}, v{x}")
    wave_sum(s, t)
    e(f"v_mul_f32 v{m}, {hexf(1.0/n)}, v{s}")
    e(f"v_mov_b32 v{s}, 0")
    for x in xs:
        e(f"v_sub_f32 v{d}, v{x}, v{m}")
        e(f"v_fmac_f32 v{s}, v{d}, v{d}")
    wave_sum(s, t)
    e(f"v_mul_f32 v{s}, {hexf(1.0/n)}, v{s}"); rnd(s, t)
    rnd(m, t)
    e(f"v_add_f32 v{s}, {hexf(1e-5)}, v{s}"); rnd(s, t)
    e(f"v_sqrt_f32 v{s}, v{s}"); e("s_nop 0"); rnd(s, t)
    e(f"v_rcp_f32 v{d}, v{s}"); e("s_nop 0")
    e(f"v_fma_f32 v{t}, -v{s}, v{d}, 1.0"); e(f"v_fmac_f32 v{d}, v{t}, v{d}")
    for x in xs:
        e(f"v_sub_f32 v{x}, v{x}, v{m}"); rnd(x, t)
        e(f"v_mul_f32 v{x}, v{x}, v{d}"); rnd(x, t)

import struct
def hexf(f): return "0x%08x" % struct.unpack("<I", struct.pack("<f", f))[0]

def k_hln():
    n = "hln_kernel"
    YL = 912
    kstart(n, 128, 16*YL, 128, 1024)
    srd(8, 'ws', WS_YT, SD); srd(12, 'q', 0, SD); srd(16, 'ws', WS_H, SD); srd(20, 'ws', WS_HN, SD)
    e("s_lshl_b32 s4, s2, 5")
    e("v_lshrrev_b32 v3, 1, v0"); e("v_and_b32 v2, 1, v0")
    e("v_lshlrev_b32 v4, 12, v3"); e("v_lshlrev_b32 v5, 4, v2"); e("v_add_u32 v4, v4, v5")
    e("v_cmp_gt_u32 vcc, 448, v3"); e("s_and_saveexec_b64 s[24:25], vcc")
    e("s_cbranch_execz hln_skip")
    e("buffer_load_dwordx4 v[8:11], v4, s[8:11], s4 offen")
    e("v_lshlrev_b32 v4, 1, v3"); e(f"v_mul_u32_u24 v5, {8*YL}, v2"); e("v_add_u32 v4, v4, v5")
    e("s_waitcnt vmcnt(0)")
    for i in range(8):
        if i & 1: e(f"v_lshrrev_b32 v12, 16, v{8+i//2}")
        e(f"ds_write_b16 v4, v{12 if i & 1 else 8+i//2} offset:{i*YL}")
    lab("hln_skip")
    e("s_mov_b64 exec, s[24:25]")
    e("v_and_b32 v1, 63, v0"); e("v_lshrrev_b32 v3, 6, v0")
    e("s_lshl_b32 s5, s2, 4")
    e("v_add_u32 v4, s5, v3"); e("v_mul_u32_u24 v4, 896, v4"); e("v_lshlrev_b32 v5, 1, v1"); e("v_add_u32 v4, v4, v5")
    e(f"v_mul_u32_u24 v6, {YL}, v3"); e("v_add_u32 v6, v6, v5")
    for i in range(7): e(f"buffer_load_ushort v{10+i}, v4, s[12:15], 0 offen offset:{128*i}")
    e("s_waitcnt lgkmcnt(0)"); e("s_barrier")
    for i in range(7): e(f"ds_read_u16 v{20+i}, v6 offset:{128*i}")
    e("s_waitcnt vmcnt(0) lgkmcnt(0)")
    for i in range(7):
        e(f"v_lshlrev_b32 v{10+i}, 16, v{10+i}"); e(f"v_lshlrev_b32 v{20+i}, 16, v{20+i}")
        e(f"v_mov_b32 v{30+i}, v{10+i}")
    ln_rows([30+i for i in range(7)], 448, 40, None)
    for i in range(7):
        e(f"v_mul_f32 v{30+i}, v{30+i}, v{20+i}"); rnd(30+i, 44)
        e(f"v_add_f32 v{30+i}, v{30+i}, v{10+i}"); rnd(30+i, 44)
        e(f"v_lshrrev_b32 v45, 16, v{30+i}")
        e(f"buffer_store_short v45, v4, s[16:19], 0 offen offset:{128*i}")
    ln_rows([30+i for i in range(7)], 448, 40, None)
    for i in range(7):
        e(f"v_lshrrev_b32 v45, 16, v{30+i}")
        e(f"buffer_store_short v45, v4, s[20:23], 0 offen offset:{128*i}")
    kend(n, 48)

def k_ln2():
    n = "ln2_kernel"
    TL = 48
    kstart(n, 128, 896*TL, 128, 1024)
    srd(8, 'ws', WS_Z, 2048*3584); srd(12, 'ws', WS_Z2T, 896*4096)
    e("v_and_b32 v1, 63, v0"); e("v_lshrrev_b32 v3, 6, v0")
    e("s_lshl_b32 s5, s2, 4")
    e("v_add_u32 v4, s5, v3"); e("v_mul_u32_u24 v4, 3584, v4"); e("v_lshlrev_b32 v5, 1, v1"); e("v_add_u32 v4, v4, v5")
    for i in range(14):
        e(f"buffer_load_ushort v{10+i}, v4, s[8:11], 0 offen offset:{1792+128*i}")
    e("s_waitcnt vmcnt(0)")
    for i in range(14): e(f"v_lshlrev_b32 v{10+i}, 16, v{10+i}")
    ln_rows([10+i for i in range(14)], 896, 40, None)
    e(f"v_mul_u32_u24 v6, {TL}, v1"); e("v_lshlrev_b32 v5, 1, v3"); e("v_add_u32 v6, v6, v5")
    for i in range(14):
        e(f"v_lshrrev_b32 v45, 16, v{10+i}")
        e(f"ds_write_b16 v6, v45 offset:{64*TL*i}")
    e("s_waitcnt lgkmcnt(0)"); e("s_barrier")
    e("s_lshl_b32 s4, s2, 5")
    e("v_lshrrev_b32 v1, 1, v0"); e("v_and_b32 v2, 1, v0")
    for p in range(2):
        e(f"v_add_u32 v3, {512*p}, v1")
        if p == 1:
            e("v_cmp_gt_u32 vcc, 896, v3"); e("s_and_saveexec_b64 s[24:25], vcc"); e("s_cbranch_execz ln2_kernel_end")
        e(f"v_mul_u32_u24 v4, {TL}, v3"); e("v_lshlrev_b32 v5, 4, v2"); e("v_add_u32 v4, v4, v5")
        e("ds_read_b128 v[8:11], v4")
        e("v_lshlrev_b32 v4, 12, v3"); e("v_add_u32 v4, v4, v5")
        e("s_waitcnt lgkmcnt(0)")
        e("buffer_store_dwordx4 v[8:11], v4, s[12:15], s4 offen")
    kend(n, 48)

def gemm(n, nwg, A, B, K, BM, BN, WM, WN, decode, epi, NB=3, pre=None):
    TM, TN = BM//WM//32, BN//WN//32
    ABUF, BBUF = BM*128, BN*128
    STG = ABUF + BBUF
    NI = (BM+BN)//32
    NIA = BM//32
    kstart(n, nwg, NB*STG, nwg)
    srd(8, A[0], A[1], A[2]); srd(12, B[0], B[1], B[2])
    decode()
    e(f"s_mov_b32 s26, {A[3]}"); e(f"s_mov_b32 s27, {B[3]}")
    e("v_lshrrev_b32 v15, 6, v0")
    e("v_and_b32 v1, 63, v0"); e("v_lshrrev_b32 v2, 3, v1"); e("v_and_b32 v3, 7, v1")
    e("s_nop 0"); e("v_readfirstlane_b32 s28, v15"); e("s_nop 3"); e("s_lshl_b32 s28, s28, 10")
    for i in range(NI):
        isA = i < NIA
        q = i if isA else i - NIA
        e("v_lshlrev_b32 v20, 3, v15"); e(f"v_add_u32 v20, {32*q}, v20"); e("v_add_u32 v20, v20, v2")
        e("v_bfe_u32 v21, v20, 1, 3"); e("v_xor_b32 v21, v21, v3"); e("v_lshlrev_b32 v21, 4, v21")
        e(f"v_add_u32 v20, s{4 if isA else 5}, v20"); e(f"v_mul_lo_u32 v20, v20, s{26 if isA else 27}")
        e(f"v_add_u32 v{24+i}, v20, v21")
    e("v_and_b32 v13, 31, v0"); e("v_bfe_u32 v14, v0, 5, 1")
    e(f"v_and_b32 v16, {WM-1}, v15"); e(f"v_lshrrev_b32 v17, {WM.bit_length()-1}, v15")
    e(f"v_mul_u32_u24 v16, {32*TM}, v16"); e(f"v_mul_u32_u24 v17, {32*TN}, v17")
    AR, BR = 40, 44
    for (reg, woff, base) in ((AR, 16, 0), (BR, 17, ABUF)):
        e(f"v_add_u32 v20, v{woff}, v13")
        e("v_bfe_u32 v21, v20, 1, 3")
        e("v_and_b32 v22, 1, v21"); e("v_xor_b32 v22, v22, v14"); e("v_lshlrev_b32 v22, 4, v22")
        e("v_lshlrev_b32 v20, 7, v20"); e("v_add_u32 v20, v20, v22"); e(f"v_add_u32 v20, {base}, v20")
        e("v_lshrrev_b32 v21, 1, v21")
        for kk in range(4):
            e(f"v_xor_b32 v22, {kk}, v21"); e("v_lshlrev_b32 v22, 5, v22"); e(f"v_add_u32 v{reg+kk}, v20, v22")
    FA = 48; FB = FA + 8*TM
    ACC = 96
    assert FB + 8*TN <= ACC
    for i in range(16*TM*TN): e(f"v_mov_b32 v{ACC+i}, 0")
    NS = K//64
    def dma():
        for i in range(NI):
            e(f"s_add_u32 m0, s29, {4096*i}")
            e("s_nop 0")
            e(f"buffer_load_dwordx4 v{24+i}, s[{8 if i < NIA else 12}:{11 if i < NIA else 15}], s6 offen lds")
        e("s_add_u32 s6, s6, 128")
        e(f"s_cmp_ge_u32 s6, {2*K}"); e("s_cselect_b32 s6, 0, s6")
        e(f"s_add_u32 s29, s29, {STG}")
        e(f"s_cmp_ge_u32 s29, s30")
        e(f"s_cselect_b32 s29, s28, s29")
    def rd(kk, st):
        for i in range(TM): e(f"ds_read_b128 v[{FA+4*(2*i+st)}:{FA+4*(2*i+st)+3}], v{AR+kk} offset:{4096*i}")
        for j in range(TN): e(f"ds_read_b128 v[{FB+4*(2*j+st)}:{FB+4*(2*j+st)+3}], v{BR+kk} offset:{4096*j}")
    e("s_mul_i32 s6, s2, 5"); e("s_lshr_b32 s33, s2, 3"); e("s_add_u32 s6, s6, s33")
    e(f"s_mul_hi_u32 s33, s6, {(1<<32)//NS + 1}"); e(f"s_mul_i32 s33, s33, {NS}"); e("s_sub_u32 s6, s6, s33"); e("s_lshl_b32 s6, s6, 7")
    e("s_mov_b32 s29, s28"); e(f"s_add_u32 s30, s28, {NB*STG}")
    e("s_mov_b32 s31, 0")
    e(f"s_mov_b32 s34, {-(NB-1)*STG & 0xffffffff}"); e(f"s_mov_b32 s35, {STG}")
    if pre: pre(ACC, TM, TN)
    for _ in range(NB-1): dma()
    e(f"s_waitcnt vmcnt({(NB-2)*NI})"); e("s_barrier")
    e("s_mov_b32 s7, 0")
    lab(f"{n}_loop")
    rd(0, 0)
    pend = list(range(NI))
    def one_dma():
        if not pend: return
        i = pend.pop(0)
        e(f"s_add_u32 m0, s29, {4096*i}")
        e("s_nop 0")
        e(f"buffer_load_dwordx4 v{24+i}, s[{8 if i < NIA else 12}:{11 if i < NIA else 15}], s6 offen lds")
    per = (NI + 3)//4
    for kk in range(4):
        st = kk & 1
        if kk < 3: rd(kk+1, st ^ 1); e(f"s_waitcnt lgkmcnt({TM+TN})")
        else: e("s_waitcnt lgkmcnt(0)")
        cnt = 0
        for i in range(TM):
            for j in range(TN):
                a = ACC + 16*(i*TN+j)
                e(f"v_mfma_f32_32x32x16_bf16 v[{a}:{a+15}], v[{FA+4*(2*i+st)}:{FA+4*(2*i+st)+3}], v[{FB+4*(2*j+st)}:{FB+4*(2*j+st)+3}], v[{a}:{a+15}]")
                if cnt < per: one_dma(); cnt += 1
        while cnt < per: one_dma(); cnt += 1
    assert not pend
    e("s_add_u32 s6, s6, 128")
    e(f"s_cmp_ge_u32 s6, {2*K}"); e("s_cselect_b32 s6, 0, s6")
    e(f"s_add_u32 s29, s29, {STG}")
    e(f"s_cmp_ge_u32 s29, s30")
    e(f"s_cselect_b32 s29, s28, s29")
    e("s_add_u32 s31, s31, 1"); e(f"s_cmp_eq_u32 s31, {NB}")
    e("s_cselect_b32 s33, s34, s35"); e("s_cselect_b32 s31, 0, s31")
    for kk in range(4): e(f"v_add_u32 v{AR+kk}, s33, v{AR+kk}"); e(f"v_add_u32 v{BR+kk}, s33, v{BR+kk}")
    e(f"s_waitcnt vmcnt({(NB-2)*NI})"); e("s_barrier")
    e("s_add_u32 s7, s7, 1"); e(f"s_cmp_lt_u32 s7, {NS}"); e(f"s_cbranch_scc1 {n}_loop")
    e("s_waitcnt vmcnt(0)")
    e("s_nop 15"); e("s_nop 3")
    epi(ACC, TM, TN)
    kend(n, ACC + 16*TM*TN + (40 if pre else 0))

def gelu(v, t):
    e(f"v_mul_f32 v{t}, v{v}, v{v}")
    e(f"v_fma_f32 v{t}, v{t}, s30, 1.0"); e(f"v_mul_f32 v{t}, v{t}, v{v}")
    e(f"v_mul_f32 v{t}, s31, v{t}")
    e(f"v_exp_f32 v{t}, v{t}"); e("s_nop 0")
    e(f"v_add_f32 v{t}, 1.0, v{t}")
    e(f"v_rcp_f32 v{t}, v{t}"); e("s_nop 0")
    e(f"v_mul_f32 v{v}, v{v}, v{t}")

def k_gemm1():
    def decode():
        e("s_mul_i32 s5, s2, 4682"); e("s_lshr_b32 s5, s5, 16")
        e("s_mul_i32 s4, s5, 14"); e("s_sub_u32 s4, s2, s4")
        e("s_lshl_b32 s4, s4, 7"); e("s_lshl_b32 s5, s5, 6")
    def epi(ACC, TM, TN):
        srd(16, 'ws', WS_Z, 2048*3584)
        e(f"s_mov_b32 s30, {hexf(0.044715)}"); e(f"s_mov_b32 s31, {hexf(-2*0.7978845608028654*1.4426950408889634)}")
        for j in range(TN):
            e(f"v_add_u32 v3, v17, v13"); e(f"v_add_u32 v3, {32*j}, v3"); e("v_add_u32 v3, s5, v3"); e("v_mul_u32_u24 v3, 3584, v3")
            e("v_lshlrev_b32 v20, 2, v14"); e("v_add_u32 v20, v20, v16"); e("v_add_u32 v20, s4, v20"); e("v_lshlrev_b32 v20, 1, v20")
            e("v_add_u32 v3, v3, v20")
            for i in range(TM):
                for rq in range(4):
                    a = ACC + 16*(i*TN+j) + 4*rq
                    for r in range(4): rnd(a+r, 21); gelu(a+r, 21)
                    e(f"v_cvt_pk_bf16_f32 v22, v{a}, v{a+1}"); e(f"v_cvt_pk_bf16_f32 v23, v{a+2}, v{a+3}")
                    e(f"buffer_store_dwordx2 v[22:23], v3, s[16:19], 0 offen offset:{2*(32*i+8*rq)}")
    gemm("gemm1_kernel", 448, ('ws', WS_WINT, 1792*896, 896), ('ws', WS_HN, SD, 896), 448, 128, 64, 2, 2, decode, epi, 3)

def k_gemm2():
    def decode():
        e("s_and_b32 s5, s2, 31"); e("s_lshr_b32 s4, s2, 5")
        e("s_lshl_b32 s4, s4, 7"); e("s_lshl_b32 s5, s5, 6")
    def pre(ACC, TM, TN):
        P = ACC + 16*TM*TN
        srd(16, 'ws', WS_Z, 2048*3584); srd(20, 'ws', WS_U, 2048*1792); srd(36, 'bsp', 0, 4096)
        e(f"v_add_u32 v3, v17, v13"); e("v_add_u32 v3, s5, v3")
        e("v_lshlrev_b32 v21, 1, v3")
        e(f"buffer_load_ushort v{P+32}, v21, s[36:39], 0 offen")
        e("v_lshlrev_b32 v20, 2, v14"); e("v_add_u32 v20, v20, v16"); e("v_add_u32 v20, s4, v20"); e("v_lshlrev_b32 v20, 1, v20")
        e("v_mul_u32_u24 v21, 3584, v3"); e("v_add_u32 v21, v21, v20")
        e("v_mul_u32_u24 v3, 1792, v3"); e(f"v_add_u32 v{P+33}, v3, v20")
        for i in range(TM):
            for rq in range(4):
                e(f"buffer_load_dwordx2 v[{P+2*(4*i+rq)}:{P+2*(4*i+rq)+1}], v21, s[16:19], 0 offen offset:{2*(32*i+8*rq)}")
    def epi(ACC, TM, TN):
        P = ACC + 16*TM*TN
        e(f"v_lshlrev_b32 v24, 16, v{P+32}")
        for i in range(TM):
            for rq in range(4):
                a = ACC + 16*i + 4*rq
                for r in range(4): rnd(a+r, 25); e(f"v_add_f32 v{a+r}, v{a+r}, v24"); rnd(a+r, 25)
                for r in range(4):
                    src = P + 2*(4*i+rq) + r//2
                    e(f"v_and_b32 v28, 0xffff0000, v{src}" if r & 1 else f"v_lshlrev_b32 v28, 16, v{src}")
                    e(f"v_mul_f32 v{a+r}, v{a+r}, v28")
                e(f"v_cvt_pk_bf16_f32 v{a}, v{a}, v{a+1}"); e(f"v_cvt_pk_bf16_f32 v{a+1}, v{a+2}, v{a+3}")
                e(f"buffer_store_dwordx2 v[{a}:{a+1}], v{P+33}, s[20:23], 0 offen offset:{2*(32*i+8*rq)}")
    gemm("gemm2_kernel", 224, ('ws', WS_Z2T, 896*4096, 4096), ('wsp', 0, 2048*4096, 4096), 2048, 128, 64, 2, 2, decode, epi, 4, pre)

def k_gemm3():
    def decode():
        e("s_and_b32 s5, s2, 31"); e("s_lshr_b32 s4, s2, 5")
        e("s_lshl_b32 s4, s4, 6"); e("s_lshl_b32 s5, s5, 6")
    def pre(ACC, TM, TN):
        P = ACC + 16*TM*TN
        srd(16, 'ws', WS_H, SD); srd(20, 'out', 0, SD)
        e(f"v_add_u32 v3, v17, v13"); e("v_add_u32 v3, s5, v3")
        e("v_lshlrev_b32 v20, 2, v14"); e("v_add_u32 v20, v20, v16"); e("v_add_u32 v20, s4, v20"); e("v_lshlrev_b32 v20, 1, v20")
        e("v_mul_u32_u24 v3, 896, v3"); e(f"v_add_u32 v{P+33}, v3, v20")
        for rq in range(4):
            e(f"buffer_load_dwordx2 v[{P+2*rq}:{P+2*rq+1}], v{P+33}, s[16:19], 0 offen offset:{16*rq}")
    def epi(ACC, TM, TN):
        P = ACC + 16*TM*TN
        for rq in range(4):
            a = ACC + 4*rq
            for r in range(4): rnd(a+r, 25)
            for r in range(4):
                src = P + 2*rq + r//2
                e(f"v_and_b32 v28, 0xffff0000, v{src}" if r & 1 else f"v_lshlrev_b32 v28, 16, v{src}")
                e(f"v_add_f32 v{a+r}, v{a+r}, v28")
            e(f"v_cvt_pk_bf16_f32 v{a}, v{a}, v{a+1}"); e(f"v_cvt_pk_bf16_f32 v{a+1}, v{a+2}, v{a+3}")
            e(f"buffer_store_dwordx2 v[{a}:{a+1}], v{P+33}, s[20:23], 0 offen offset:{16*rq}")
    gemm("gemm3_kernel", 224, ('ws', WS_WOUTT, 448*1792, 1792), ('ws', WS_U, 2048*1792, 1792), 896, 64, 64, 2, 2, decode, epi, 4, pre)

k_prep(); k_conv(); k_hln(); k_gemm1(); k_ln2(); k_gemm2(); k_gemm3()
hdr = open(OUT + ".ref").read().split("; Override launch")[0]
txt = hdr + "\n".join(launches) + '\n.amdgcn_target "amdgcn-amd-amdhsa--gfx950"\n.text\n' + "\n".join(L) + '\n.p2align 8\n.section .rodata,"a"\n' + "\n".join(descs) + "\n"
open(OUT, "w").write(txt)
print("wrote", len(txt), "bytes")
```
